```python
import torch

def _softmax(x, axis=-1):
    return torch.softmax(x, dim=axis)

def _gelu(x):
    return torch.nn.functional.gelu(x, approximate='tanh')

def _silu(x):
    return torch.nn.functional.silu(x)

def _sigmoid(x):
    return torch.sigmoid(x)

def _layernorm(x, axis=-1, eps=1e-05):
    m = x.mean(dim=axis, keepdim=True)
    v = x.var(dim=axis, keepdim=True, unbiased=False)
    return (x - m) / torch.sqrt(v + eps)

def _scatter_add(tgt, idx, src, axis=0):
    return tgt.clone().index_add_(axis, idx, src)

def _segment_sum(src, seg, n):
    out = torch.zeros((n,) + src.shape[1:], dtype=src.dtype)
    return out.index_add_(0, seg, src)

def _pad(x, pw):
    flat = tuple((v for pair in reversed(pw) for v in pair))
    return torch.nn.functional.pad(x, flat)
kernel_name = 'adaLN_cond__sliding_block_cached__dense_activation_relu__prompt'

def setup_inputs():

    _w = lambda a: (lambda t: t.to(torch.bfloat16) if t.is_floating_point() else t)(torch.as_tensor(a))

    def _A_setup():
        B, Sq, D = (1, 2048, 448)
        Hq, Hkv, Sk, Dh = (16, 8, 2048, 256)
        assert Hq % Hkv == 0, (Hq, Hkv)
        return {'x': _w((lambda *s: torch.randn(*s, dtype=torch.bfloat16) * 0.05)(B, Sq, D)), 'k_cache': _w((lambda *s: torch.randn(*s, dtype=torch.bfloat16) * 3.2)(B, Hkv, Sk, Dh)), 'v_cache': _w((lambda *s: torch.randn(*s, dtype=torch.bfloat16) * 0.4)(B, Hkv, Sk, Dh)), 'wq': _w((lambda *s: torch.randn(*s, dtype=torch.bfloat16) * 3.2)(D, Hq * Dh) * D ** (-0.5)), 'wo': _w((lambda *s: torch.randn(*s, dtype=torch.bfloat16) * 0.4)(Hq * Dh, D) * (Hq * Dh) ** (-0.5))}
    _A_in = _A_setup()

    def _B_setup():
        B, S, D, Dff = (1, 2048, 448, 1792)
        return {'x': _w((lambda *s: torch.randn(*s, dtype=torch.bfloat16) * 0.05)(B, S, D)), 'w1': _w((lambda *s: torch.randn(*s, dtype=torch.bfloat16) * 0.05)(D, Dff)), 'w2': _w((lambda *s: torch.randn(*s, dtype=torch.bfloat16) * 0.05)(Dff, D))}
    _B_in = _B_setup()
    return {'A_x': _A_in['x'], 'A_k_cache': _A_in['k_cache'], 'A_v_cache': _A_in['v_cache'], 'A_wq': _A_in['wq'], 'A_wo': _A_in['wo'], 'B_x': _B_in['x'], 'B_w1': _B_in['w1'], 'B_w2': _B_in['w2'], 'c': _w((lambda *s: torch.randn(*s, dtype=torch.bfloat16) * 0.1)(1, 448) * 8.0), 'w_mod': _w((lambda *s: torch.randn(*s, dtype=torch.bfloat16) * 0.1)(448, 6 * 448) * 448 ** (-0.5) * 8.0)}

def reference(A_x, A_k_cache, A_v_cache, A_wq, A_wo, B_x, B_w1, B_w2, c, w_mod):

    def _A_ref(x, k_cache, v_cache, wq, wo):
        B, Sq, D = x.shape
        Hq, Dh = (16, 256)
        Hkv, Sk = (k_cache.shape[1], k_cache.shape[2])
        W = min(4096, max(256, Sk // 4))
        rep = Hq // Hkv
        q = (lambda x, *d: x.permute(*d))((x @ wq).reshape(B, Sq, Hq, Dh), 0, 2, 1, 3)
        k = (lambda x, n, axis: torch.repeat_interleave(x, n, dim=axis))(k_cache[:, :, Sk - W:, :], rep, axis=1)
        v = (lambda x, n, axis: torch.repeat_interleave(x, n, dim=axis))(v_cache[:, :, Sk - W:, :], rep, axis=1)
        scores = torch.einsum('bhqd,bhkd->bhqk', q, k) * Dh ** (-0.5)
        p = _softmax(scores, axis=-1)
        o = torch.einsum('bhqk,bhkd->bhqd', p, v)
        return (lambda x, *d: x.permute(*d))(o, 0, 2, 1, 3).reshape(B, Sq, Hq * Dh) @ wo

    def _B_ref(x, w1, w2):
        h = torch.einsum('bsd,df->bsf', x, w1)
        zero = torch.zeros_like(h)
        h = torch.maximum(h, zero)
        return torch.einsum('bsf,fd->bsd', h, w2)
    x = A_x
    mod = (_silu(c) @ w_mod).reshape(c.shape[0], 6, 1, -1)
    sa, ca, ga, sb, cb, gb = (mod[:, 0].clone(), mod[:, 1].clone(), mod[:, 2].clone(), mod[:, 3].clone(), mod[:, 4].clone(), mod[:, 5].clone())
    h = _layernorm(x, axis=-1) * (1 + ca) + sa
    x = x + ga * _A_ref(h, A_k_cache, A_v_cache, A_wq, A_wo)
    h = _layernorm(x, axis=-1) * (1 + cb) + sb
    x = x + gb * _B_ref(h, B_w1, B_w2)
    return x
```

```python
PFX = "adaLN_cond__sliding_block_cached__dense_activation_relu__prompt"
WS_BYTES = 268435456
KA_X, KA_K, KA_V, KA_WQ, KA_WO, KA_BX, KA_W1, KA_W2, KA_C, KA_WMOD, KA_OUT, KA_DBG, KA_WS = [8 * i for i in range(13)]
WS_HF  = 0x0000000
WS_ST  = 0x0200000
WS_YP  = 0x1000000
WS_MOD = 0x3000000
WS_X1  = 0x3100000
WS_H2  = 0x3500000
WS_HH  = 0x3700000
WS_W1  = 0x4000000
WS_W2  = 0x4200000
WS_TS  = 0x5000000

class Asm:
    def __init__(self):
        self.l = []
    def __call__(self, s):
        self.l.append("    " + s)
    def label(self, s):
        self.l.append(s + ":")
    def raw(self, s):
        self.l.append(s)
    def text(self):
        return "\n".join(self.l) + "\n"

def kernel_head(a, name):
    a.raw(".globl %s" % name)
    a.raw(".p2align 8")
    a.raw(".type %s,@function" % name)
    a.label(name)

def kernel_desc(name, vgpr, agpr=0, sgpr=102):
    acc = (vgpr + 3) // 4 * 4
    nfv = acc + agpr if agpr else vgpr
    return """.p2align 6
.amdhsa_kernel %s
  .amdhsa_next_free_vgpr %d
  .amdhsa_next_free_sgpr %d
  .amdhsa_accum_offset %d
  .amdhsa_group_segment_fixed_size 0
  .amdhsa_kernarg_size 104
  .amdhsa_user_sgpr_count 2
  .amdhsa_user_sgpr_kernarg_segment_ptr 1
  .amdhsa_system_sgpr_workgroup_id_x 1
.end_amdhsa_kernel
""" % (name, nfv, sgpr, acc)

def srd(a, d, b, nbytes):
    a("s_mov_b32 s%d, s%d" % (d, b))
    a("s_and_b32 s%d, s%d, 0xffff" % (d + 1, b + 1))
    a("s_mov_b32 s%d, 0x%x" % (d + 2, nbytes))
    a("s_mov_b32 s%d, 0x20000" % (d + 3))

def file_text(launches, bodies, descs):
    s = "".join("; @launch kernel=%s grid=(%d,1,1) block=(%d,1,1) lds=%d\n" % l for l in launches)
    s += '.amdgcn_target "amdgcn-amd-amdhsa--gfx950"\n.text\n'
    s += "".join(bodies)
    s += '.section .rodata,"a"\n'
    s += "".join(descs)
    return s
NSCALE = 64
```

```python
from common import *
import math, struct
def f2h(x): return "0x%08x" % struct.unpack("<I", struct.pack("<f", x))[0]

def wave_sum(a, r, t):
    a("s_nop 1")
    a("v_add_f32_dpp v%d, v%d, v%d quad_perm:[1,0,3,2] row_mask:0xf bank_mask:0xf" % (r, r, r)); a("s_nop 1")
    a("v_add_f32_dpp v%d, v%d, v%d quad_perm:[2,3,0,1] row_mask:0xf bank_mask:0xf" % (r, r, r)); a("s_nop 1")
    a("v_add_f32_dpp v%d, v%d, v%d row_ror:4 row_mask:0xf bank_mask:0xf" % (r, r, r)); a("s_nop 1")
    a("v_add_f32_dpp v%d, v%d, v%d row_ror:8 row_mask:0xf bank_mask:0xf" % (r, r, r))
    xrow_sum(a, [r], [t])

def xrow_sum(a, rs, ts):
    for sw in ("v_permlane16_swap_b32", "v_permlane32_swap_b32"):
        for r, t in zip(rs, ts): a("v_mov_b32 v%d, v%d" % (t, r))
        a("s_nop 1")
        for r, t in zip(rs, ts): a("%s v%d, v%d" % (sw, r, t))
        a("s_nop 1")
        for r, t in zip(rs, ts): a("v_add_f32 v%d, v%d, v%d" % (r, r, t))

def unpack8(a, dst, src):
    for j in range(4):
        a("v_lshlrev_b32 v%d, 16, v%d" % (dst + 2 * j, src + j))
        a("v_and_b32 v%d, 0xffff0000, v%d" % (dst + 2 * j + 1, src + j))

def gen_k0(name, opt=None):
    opt = opt or {}
    STF = opt.get("stflags", "")
    a = Asm(); kernel_head(a, name)
    L = lambda s: "%s_%s" % (name, s)
    a("s_cmp_ge_u32 s2, 256"); a("s_cbranch_scc1 %s" % L("end"))
    a("s_load_dwordx4 s[4:7], s[0:1], %d" % KA_X)
    a("s_load_dwordx4 s[8:11], s[0:1], %d" % KA_V)
    a("s_load_dwordx2 s[12:13], s[0:1], %d" % KA_WO)
    a("s_load_dwordx4 s[16:19], s[0:1], %d" % KA_C)
    a("s_load_dwordx4 s[20:23], s[0:1], %d" % KA_DBG)
    a("v_lshrrev_b32 v1, 6, v0"); a("v_and_b32 v2, 63, v0")
    a("v_readfirstlane_b32 s3, v1")
    a("v_and_b32 v3, 15, v2"); a("v_lshrrev_b32 v4, 4, v2")
    a("s_and_b32 s24, s2, 7")
    a("s_bfe_u32 s25, s2, 0x10003"); a("s_lshl_b32 s26, s24, 1"); a("s_add_u32 s25, s25, s26")
    a("s_bfe_u32 s26, s2, 0x10004")
    a("s_bfe_u32 s27, s2, 0x20005")
    a("s_bfe_u32 s28, s2, 0x10007")
    a("s_waitcnt lgkmcnt(0)")
    sX, sR, sL, sC, sM, sD, sW = 32, 36, 40, 44, 48, 52, 56
    srd(a, sX, 4, 1835008); srd(a, sC, 16, 896); srd(a, sM, 18, 448 * 2688 * 2); srd(a, sD, 20, 256); srd(a, sW, 22, WS_BYTES)
    a("s_cmp_eq_u32 s26, 0")
    a("s_cselect_b32 s60, s6, s8"); a("s_cselect_b32 s61, s7, s9")
    a("s_cselect_b32 s62, s10, s12"); a("s_cselect_b32 s63, s11, s13")
    srd(a, sR, 60, 8388608); srd(a, sL, 62, 448 * 4096 * 2)
    vW = 64
    vC = 92
    a("v_and_b32 v5, 3, v0"); a("v_lshrrev_b32 v6, 2, v0")
    a("v_mul_u32_u24 v7, 5376, v6"); a("v_lshl_add_u32 v7, v5, 4, v7")
    a("v_lshlrev_b32 v8, 1, v6")
    a("s_cmp_ge_u32 s2, 84"); a("s_cbranch_scc1 %s" % L("nogl"))
    a("s_lshl_b32 s29, s2, 6")
    for i in range(7):
        a("buffer_load_ushort v%d, v8, s[%d:%d], 0 offen offset:%d" % (vC + i, sC, sC + 3, 128 * i))
    for i in range(7):
        a("buffer_load_dwordx4 v[%d:%d], v7, s[%d:%d], s29 offen" % (vW + 4 * i, vW + 4 * i + 3, sM, sM + 3))
        if i < 6: a("s_add_u32 s29, s29, %d" % (64 * 5376))
    a.label(L("nogl"))
    vX = 100
    a("s_lshl_b32 s29, s2, 3"); a("s_lshl_b32 s30, s3, 1"); a("s_add_u32 s29, s29, s30")
    a("s_mul_i32 s30, s29, 896")
    a("v_lshlrev_b32 v9, 4, v2")
    a("buffer_load_dwordx4 v[%d:%d], v9, s[%d:%d], s30 offen" % (vX, vX + 3, sX, sX + 3))
    a("buffer_load_dwordx4 v[%d:%d], v9, s[%d:%d], s30 offen offset:896" % (vX + 4, vX + 7, sX, sX + 3))
    vR = 128
    a("v_lshrrev_b32 v10, 2, v3"); a("v_lshlrev_b32 v10, 3, v10"); a("v_and_b32 v11, 3, v3"); a("v_add_u32 v10, v10, v11")
    a("v_lshlrev_b32 v12, 9, v10"); a("v_lshl_add_u32 v12, v4, 4, v12")
    a("s_lshl_b32 s30, s24, 20"); a("s_lshl_b32 s31, s27, 16"); a("s_add_u32 s30, s30, s31")
    a("s_lshl_b32 s31, s3, 14"); a("s_add_u32 s30, s30, s31"); a("s_add_u32 s30, s30, %d" % (1536 * 512))
    for kt in range(2):
        for kd in range(8):
            r = vR + (kt * 8 + kd) * 4
            a("buffer_load_dwordx4 v[%d:%d], v12, s[%d:%d], s30 offen offset:%d" % (r, r + 3, sR, sR + 3, kt * 2048 + kd * 64))
    a("s_cmp_eq_u32 s26, 0"); a("s_cbranch_scc0 %s" % L("dmaN"))
    a("v_lshrrev_b32 v13, 5, v2"); a("v_and_b32 v14, 31, v2")
    a("s_mul_i32 s30, s3, 56")
    a("v_add_u32 v13, s30, v13")
    a("s_mul_i32 s31, s28, %d" % (224 * 8192)); a("s_lshl_b32 s64, s25, 9"); a("s_add_u32 s31, s31, s64")
    a("s_mul_i32 s64, s3, %d" % (56 * 512))
    for k in range(28):
        a("v_bfe_u32 v15, v13, 3, 2"); a("v_and_b32 v16, 3, v13"); a("v_lshl_or_b32 v15, v15, 2, v16")
        a("v_xor_b32 v15, v15, v14"); a("v_lshlrev_b32 v15, 4, v15"); a("v_lshl_add_u32 v15, v13, 13, v15")
        a("s_add_u32 m0, s64, %d" % (k * 1024))
        a("v_add_u32 v13, 2, v13")
        a("buffer_load_dwordx4 v15, s[%d:%d], s31 offen lds" % (sL, sL + 3))
    a("s_branch %s" % L("dmadone"))
    a.label(L("dmaN"))
    for j in range(7):
        a("v_add_u32 v15, %d, v2" % (64 * j))
        a("v_mul_u32_u24 v16, 2341, v15"); a("v_lshrrev_b32 v16, 16, v16")
        a("v_mul_u32_u24 v16, 448, v16"); a("v_lshl_add_u32 v%d, v15, 4, v16" % (17 + j))
    a("s_lshl_b32 s31, s25, 8"); a("s_lshl_b32 s64, s3, 6"); a("s_add_u32 s31, s31, s64"); a("s_mul_i32 s31, s31, 896")
    a("s_mul_i32 s64, s28, 448"); a("s_add_u32 s31, s31, s64")
    a("s_mul_i32 s64, s3, %d" % (64 * 448))
    for k in range(28):
        a("s_add_u32 m0, s64, %d" % (k * 1024))
        if k and k % 7 == 0: a("s_add_u32 s31, s31, %d" % (16 * 896))
        else: a("s_nop 0")
        a("buffer_load_dwordx4 v%d, s[%d:%d], s31 offen lds" % (17 + k % 7, sL, sL + 3))
    a.label(L("dmadone"))
    LDSX = 224 * 512
    a("s_cmp_ge_u32 s2, 84"); a("s_cbranch_scc1 %s" % L("nogc"))
    a("s_waitcnt vmcnt(46)")
    for i in range(7):
        c = vC + i
        a("v_lshlrev_b32 v%d, 16, v%d" % (c, c))
        a("v_mul_f32 v30, %s, v%d" % (f2h(-math.log2(math.e)), c))
        a("v_exp_f32 v30, v30"); a("s_nop 0")
        a("v_add_f32 v30, 1.0, v30")
        a("v_rcp_f32 v30, v30"); a("s_nop 0")
        a("v_mul_f32 v30, v30, v%d" % c)
        a("v_cvt_pk_bf16_f32 v30, v30, v30")
        a("v_and_b32 v%d, 0xffff0000, v30" % c)
    for i in range(7):
        unpack8(a, 40, vW + 4 * i)
        for j in range(8):
            if i == 0: a("v_mul_f32 v%d, v%d, v%d" % (32 + j, vC, 40 + j))
            else: a("v_fmac_f32 v%d, v%d, v%d" % (32 + j, vC + i, 40 + j))
    a("s_nop 1")
    for j in range(8): a("v_add_f32_dpp v%d, v%d, v%d row_ror:4 row_mask:0xf bank_mask:0xf" % (32 + j, 32 + j, 32 + j))
    a("s_nop 1")
    for j in range(8): a("v_add_f32_dpp v%d, v%d, v%d row_ror:8 row_mask:0xf bank_mask:0xf" % (32 + j, 32 + j, 32 + j))
    xrow_sum(a, list(range(32, 40)), list(range(40, 48)))
    a("s_lshl_b32 s30, s3, 7"); a("s_add_u32 s30, s30, %d" % LDSX)
    a("v_lshlrev_b32 v30, 5, v5"); a("v_add_u32 v30, s30, v30")
    a("ds_write_b128 v30, v[32:35]"); a("ds_write_b128 v30, v[36:39] offset:16")
    a.label(L("nogc"))
    a("s_waitcnt vmcnt(0) lgkmcnt(0)")
    a("s_barrier")
    a("s_cmp_ge_u32 s2, 84"); a("s_cbranch_scc1 %s" % L("nopub"))
    a("s_cmp_lg_u32 s3, 0"); a("s_cbranch_scc1 %s" % L("nopub"))
    a("v_and_b32 v30, 31, v2"); a("v_lshlrev_b32 v30, 2, v30"); a("v_add_u32 v31, %d, v30" % LDSX)
    for w in range(4): a("ds_read_b32 v%d, v31 offset:%d" % (32 + w, 128 * w))
    a("s_waitcnt lgkmcnt(0)")
    a("v_add_f32 v32, v32, v33"); a("v_add_f32 v34, v34, v35"); a("v_add_f32 v32, v32, v34")
    a("v_cvt_pk_bf16_f32 v32, v32, v32"); a("v_and_b32 v32, 0xffff0000, v32")
    a("s_lshl_b32 s30, s2, 7"); a("s_add_u32 s30, s30, %d" % WS_MOD)
    a("buffer_store_dword v32, v30, s[%d:%d], s30 offen sc1" % (sW, sW + 3))
    a("s_waitcnt vmcnt(0)")
    a("s_cmp_ge_u32 s2, 28"); a("s_cbranch_scc1 %s" % L("nopub"))
    a("v_mov_b32 v32, 1"); a("v_mov_b32 v33, 0")
    a("s_mov_b64 s[66:67], exec"); a("s_mov_b64 exec, 1")
    a("buffer_atomic_add v32, v33, s[%d:%d], 0 offen" % (sD, sD + 3))
    a("s_mov_b64 exec, s[66:67]")
    a.label(L("nopub"))
    vA = 32
    vD = 64
    vO = 108
    a("s_mul_i32 s30, s25, %d" % (896 * 1024)); a("s_add_u32 s30, s30, %d" % WS_ST)
    a("s_lshl_b32 s31, s27, 2"); a("s_add_u32 s31, s31, s3")
    a("s_cmp_eq_u32 s26, 0"); a("s_cbranch_scc0 %s" % L("gemmN"))
    a("s_lshr_b32 s64, s31, 1"); a("s_mul_i32 s64, s64, 56"); a("s_and_b32 s65, s31, 1"); a("s_lshl_b32 s65, s65, 1"); a("s_add_u32 s64, s64, s65")
    a("s_mul_i32 s65, s28, 28"); a("s_add_u32 s64, s64, s65"); a("s_lshl_b32 s64, s64, 10"); a("s_add_u32 s30, s30, s64")
    for kk in range(4):
        a("v_add_u32 v15, %d, v4" % (4 * kk)); a("v_xor_b32 v15, v15, v3"); a("v_lshlrev_b32 v15, 4, v15")
        a("v_lshl_add_u32 v%d, v10, 9, v15" % (16 + kk))
        a("v_add_u32 v%d, 0x10000, v%d" % (20 + kk, 16 + kk))
    a("s_mov_b32 s65, %s" % f2h(math.log2(math.e) / 16))
    def gemm(part):
        frs = [(P, ct, kd) for P in range(7) for kd in range(8) for ct in range(2)]
        def rd(n):
            P, ct, kd = frs[n]; b = vA + 4 * (n % 8)
            if part == 0:
                off = (32 * P + 4 * ct) * 512 + (kd >> 2) * 256
                a("ds_read_b128 v[%d:%d], v%d offset:%d" % (b, b + 3, (16 if off < 65536 else 20) + (kd & 3), off & 0xffff))
            else:
                for hh in range(2):
                    off = (32 * kd + 4 * hh) * 448 + P * 64 + ct * 8
                    a("ds_read_b64_tr_b16 v[%d:%d], v%d offset:%d" % (b + 2 * hh, b + 2 * hh + 1, 16 if off < 65536 else 17, off & 0xffff))
        per = 1 if part == 0 else 2
        DD = 6
        def epi(P):
            d = vD + 16 * (P & 1)
            for u in range(2):
                src = [d + (0 * 2 + u) * 4 + r for r in range(4)] + [d + (1 * 2 + u) * 4 + r for r in range(4)]
                for r in src: a("v_mul_f32 v%d, s65, v%d" % (r, r))
                for j in range(4): a("v_cvt_pk_bf16_f32 v%d, v%d, v%d" % (vO + 4 * u + j, src[2 * j], src[2 * j + 1]))
                if part == 0: off = P * 4096 + u * 1024
                else: off = None
                if part == 0:
                    a("s_add_u32 s64, s30, %d" % (P * 4096))
                    a("buffer_store_dwordx4 v[%d:%d], v9, s[%d:%d], s64 offen offset:%d %s" % (vO + 4 * u, vO + 4 * u + 3, sW, sW + 3, u * 1024, STF))
                else:
                    a("s_add_u32 s64, s66, %d" % P); a("s_lshr_b32 s67, s64, 1"); a("s_lshl_b32 s67, s67, 16"); a("s_and_b32 s64, s64, 1"); a("s_lshl_b32 s64, s64, 11")
                    a("s_add_u32 s64, s64, s67"); a("s_add_u32 s64, s64, s30")
                    a("buffer_store_dwordx4 v[%d:%d], v9, s[%d:%d], s64 offen offset:%d %s" % (vO + 4 * u, vO + 4 * u + 3, sW, sW + 3, u * 1024, STF))
        for n in range(DD): rd(n)
        for n, (P, ct, kd) in enumerate(frs):
            outstanding = (min(n + DD, len(frs)) - (n + 1)) * per
            a("s_waitcnt lgkmcnt(%d)" % min(outstanding, 15))
            b = vA + 4 * (n % 8); d = vD + 16 * (P & 1)
            for kt in range(2):
                r = vR + (kt * 8 + kd) * 4
                if part == 0:
                    acc = d + (ct * 2 + kt) * 4; A, B = b, r
                else:
                    acc = d + (kt * 2 + ct) * 4; A, B = r, b
                c = "0" if kd == 0 else "v[%d:%d]" % (acc, acc + 3)
                a("v_mfma_f32_16x16x32_bf16 v[%d:%d], v[%d:%d], v[%d:%d], %s" % (acc, acc + 3, A, A + 3, B, B + 3, c))
            if n + DD < len(frs): rd(n + DD)
            if P > 0 and kd == 1 and ct == 1: epi(P - 1)
        a("s_nop 7")
        epi(6)
    gemm(0)
    a("s_branch %s" % L("gdone"))
    a.label(L("gemmN"))
    a("s_lshl_b32 s64, s31, 12"); a("s_add_u32 s30, s30, s64"); a("s_add_u32 s30, s30, %d" % (448 * 1024))
    a("s_mul_i32 s66, s28, 7")
    a("v_lshrrev_b32 v15, 2, v3"); a("v_lshl_add_u32 v15, v4, 3, v15"); a("v_mul_u32_u24 v15, 448, v15")
    a("v_and_b32 v16, 3, v2"); a("v_lshl_add_u32 v16, v16, 4, v15"); a("v_add_u32 v17, 0x10000, v16")
    a("s_mov_b32 s65, %s" % f2h(2.0 ** NSCALE))
    gemm(1)
    a.label(L("gdone"))
    a("v_cmp_gt_u32 vcc, 56, v2")
    a("s_nop 1")
    for j in range(8): a("v_cndmask_b32 v%d, 0, v%d, vcc" % (vX + j, vX + j))
    unpack8(a, 32, vX); unpack8(a, 40, vX + 4)
    for rr in range(2):
        b = 32 + 8 * rr; s = 48 + rr
        a("v_add_f32 v%d, v%d, v%d" % (s, b, b + 1))
        for j in range(2, 8): a("v_add_f32 v%d, v%d, v%d" % (s, s, b + j))
        wave_sum(a, s, 50)
        a("v_mul_f32 v%d, %s, v%d" % (s, f2h(1.0 / 448), s))
        for j in range(8): a("v_sub_f32 v%d, v%d, v%d" % (b + j, b + j, s))
        a("v_mul_f32 v%d, v%d, v%d" % (s, b, b))
        for j in range(1, 8): a("v_fmac_f32 v%d, v%d, v%d" % (s, b + j, b + j))
        a("v_cndmask_b32 v%d, 0, v%d, vcc" % (s, s))
        wave_sum(a, s, 50)
        a("v_mov_b32 v50, %s" % f2h(1e-5))
        a("v_fmac_f32 v50, %s, v%d" % (f2h(1.0 / 448), s))
        a("v_rsq_f32 v%d, v50" % s); a("s_nop 0")
        for j in range(8): a("v_mul_f32 v%d, v%d, v%d" % (b + j, b + j, s))
    a("v_mov_b32 v51, 0")
    a("s_mov_b32 s65, 0x20000")
    a.label(L("poll"))
    a("buffer_load_dword v52, v51, s[%d:%d], 0 offen sc1" % (sD, sD + 3))
    a("s_waitcnt vmcnt(0)")
    a("v_readfirstlane_b32 s64, v52")
    a("s_cmp_ge_u32 s64, 28")
    a("s_cbranch_scc1 %s" % L("pdone"))
    a("s_sleep 2")
    a("s_sub_u32 s65, s65, 1"); a("s_cmp_lg_u32 s65, 0")
    a("s_cbranch_scc1 %s" % L("poll"))
    a.label(L("pdone"))
    a("v_lshlrev_b32 v51, 5, v2")
    a("s_mov_b32 s64, %d" % WS_MOD)
    a("buffer_load_dwordx4 v[56:59], v51, s[%d:%d], s64 offen sc1" % (sW, sW + 3))
    a("buffer_load_dwordx4 v[60:63], v51, s[%d:%d], s64 offen offset:16 sc1" % (sW, sW + 3))
    a("buffer_load_dwordx4 v[64:67], v51, s[%d:%d], s64 offen offset:1792 sc1" % (sW, sW + 3))
    a("buffer_load_dwordx4 v[68:71], v51, s[%d:%d], s64 offen offset:1808 sc1" % (sW, sW + 3))
    a("s_lshr_b32 s64, s29, 4"); a("s_mul_i32 s64, s64, 14336"); a("s_and_b32 s65, s29, 15"); a("s_lshl_b32 s65, s65, 4")
    a("s_add_u32 s64, s64, s65"); a("s_add_u32 s64, s64, %d" % WS_HF)
    a("v_lshlrev_b32 v51, 8, v2")
    a("s_waitcnt vmcnt(0)")
    for j in range(8): a("v_add_f32 v%d, 1.0, v%d" % (64 + j, 64 + j))
    a("s_and_saveexec_b64 s[66:67], vcc")
    for rr in range(2):
        b = 32 + 8 * rr
        for j in range(8): a("v_fma_f32 v%d, v%d, v%d, v%d" % (b + j, b + j, 64 + j, 56 + j))
        for j in range(4): a("v_cvt_pk_bf16_f32 v%d, v%d, v%d" % (72 + 4 * rr + j, b + 2 * j, b + 2 * j + 1))
        a("buffer_store_dwordx4 v[%d:%d], v51, s[%d:%d], s64 offen offset:%d %s" % (72 + 4 * rr, 75 + 4 * rr, sW, sW + 3, 16 * rr, STF))
    a.label(L("end")); a("s_endpgm")
    return a.text(), kernel_desc(name, 192, 0, 72), (name, 256, 256, 224 * 512 + 512)

if __name__ == "__main__":
    import sys
    b, d, l = gen_k0("k0_kernel")
    open(sys.argv[1], "w").write(file_text([l], [b], [d]))
```

```python
from common import *
from sched import *

B0 = 102.0

def f2h(x):
    import struct
    return "0x%08x" % struct.unpack("<I", struct.pack("<f", x))[0]

def gen_k1(name, opt=None):
    opt = opt or {}
    D = opt.get("D", 6)
    NB = opt.get("NB", 8)
    WE = opt.get("WE", 2)
    TB = opt.get("TB", 4)
    SL = 28; NS = 5
    NODMA = opt.get("nodma", False); NOVALU = opt.get("novalu", False); NOBAR = opt.get("nobar", False)
    NOSTORE = opt.get("nostore", False)
    STAMP = opt.get("stamp", False)
    STFLAGS = opt.get("stflags", ""); DMAFLAGS = opt.get("dmaflags", "")
    b0 = opt.get("b0", B0)
    PROG = opt.get("prog", True)
    a = Asm()
    kernel_head(a, name)
    vS = [0, 32]
    vP = 64
    vNEG = 192
    vL = 200
    vT = 204
    vY = 208
    vRD = [224, 225, 226]
    vG = 227; vO = 228
    vRL = 230
    aH = 0
    aA = 112
    sW = 16
    sLW, sOFF, sST = 20, 21, 24
    a("s_cmp_ge_u32 s2, 256")
    a("s_cbranch_scc1 %s_end" % name)
    a("s_load_dwordx2 s[4:5], s[0:1], %d" % KA_WS)
    a("v_lshrrev_b32 v1, 6, v0")
    a("v_and_b32 v2, 63, v0")
    a("v_readfirstlane_b32 s6, v1")
    a("v_lshlrev_b32 v%d, 4, v2" % vRD[0])
    a("v_add_u32 v%d, 0x10000, v%d" % (vRD[1], vRD[0]))
    a("v_add_u32 v%d, 0x20000, v%d" % (vRD[2], vRD[0]))
    a("s_and_b32 s7, s2, 7")
    a("s_lshl_b32 s7, s7, 1")
    a("s_bfe_u32 s8, s2, 0x10003")
    a("s_add_u32 s7, s7, s8")
    a("s_lshr_b32 s8, s2, 4")
    a("s_lshl_b32 s8, s8, 2")
    a("s_add_u32 s8, s8, s6")
    a("s_mul_i32 s%d, s6, %d" % (sLW, 7 * 1024))
    a("s_mul_i32 s9, s7, %d" % (896 * 1024))
    a("s_add_u32 s9, s9, %d" % WS_ST)
    a("s_add_u32 s9, s9, s%d" % sLW)
    a("v_add_u32 v%d, s9, v%d" % (vG, vRD[0]))
    a("s_mul_i32 s10, s8, %d" % (28 * 1024))
    a("s_mul_i32 s11, s7, %d" % (64 * 28 * 1024))
    a("s_add_u32 s11, s11, s10")
    a("s_add_u32 s11, s11, %d" % WS_YP)
    a("v_add_u32 v%d, s11, v%d" % (vO, vRD[0]))
    a("s_waitcnt lgkmcnt(0)")
    srd(a, sW, 4, WS_BYTES)
    for j in range(7): a("s_movk_i32 s%d, 0x%x" % (sST + j, j * 4096))
    if STAMP:
        a("s_memrealtime s[40:41]"); a("s_memtime s[42:43]")
    vm = []
    def dma_ops(c):
        ops = []
        if c >= 896 // SL: return ops
        for j in range(7):
            if j in (0, 4):
                ops.append(Op("s_add_u32 m0, s%d, 0x%x" % (sLW, (c % NS) * SL * 1024 + j * 1024)))
                ops.append(Op("s_mov_b32 s%d, 0x%x" % (sOFF, c * SL * 1024 + j * 1024)))
            ops.append(Op("buffer_load_dwordx4 v%d, s[%d:%d], s%d offen offset:%d %s lds" % (vG, sW, sW + 3, sOFF, (j % 4) * 1024, DMAFLAGS), ("dma", c)))
        return ops
    def vmwait_text(pred):
        last = -1
        for i, t in enumerate(vm):
            if pred(t): last = i
        n = len(vm) - 1 - last
        assert n <= 63
        del vm[:last + 1]
        return "s_waitcnt vmcnt(%d)" % n
    def emit(op):
        tag = op.tag
        if tag is not None:
            if tag[0] == "dma" and NODMA and tag[1] >= NS - 1: return
            if tag[0] == "st" and NOSTORE: return
            if tag[0] == "vmw":
                if NODMA and tag[1] >= NS - 1: return
                a(vmwait_text(lambda t: t == ("dma", tag[1]))); return
            if tag[0] == "hw":
                a(vmwait_text(lambda t: t[0] == "h" and t[1] <= tag[1])); return
            if tag[0] == "bar":
                if not NOBAR: a("s_barrier")
                return
            vm.append(tag)
        a(op.text)
    def hload(ks, cb):
        off = cb * 14 * 1024 + ks * 1024
        r = aH + (ks * 2 + cb) * 4
        a("s_add_u32 s12, s10, %d" % (WS_HF + (off & ~4095)))
        a("buffer_load_dwordx4 a[%d:%d], v%d, s[%d:%d], s12 offen offset:%d" % (r, r + 3, vRD[0], sW, sW + 3, off & 4095))
        vm.append(("h", ks))
    if PROG:
        for op in dma_ops(0): emit(op)
        for ks in range(7):
            hload(ks, 0); hload(ks, 1)
        for op in dma_ops(1): emit(op)
        for ks in range(7, 14):
            hload(ks, 0); hload(ks, 1)
        for c in range(2, NS - 1):
            for op in dma_ops(c): emit(op)
        a(vmwait_text(lambda t: t == ("dma", 0) or t == ("h", 0)))
    else:
        for op in dma_ops(0): emit(op)
        for ks in range(14):
            hload(ks, 0); hload(ks, 1)
        for c in range(1, NS - 1):
            for op in dma_ops(c): emit(op)
        a(vmwait_text(lambda t: t == ("dma", 0) or t[0] == "h"))
    a("s_barrier")
    if STAMP:
        a("s_memrealtime s[44:45]"); a("s_memtime s[46:47]")
    NF = 896
    def read_op(f):
        off = (f % (SL * NS)) * 1024
        b = aA + 4 * (f % NB)
        return Op("ds_read_b128 a[%d:%d], v%d offset:%d" % (b, b + 3, vRD[off >> 16], off & 0xffff))
    for f in range(D): a(read_op(f).text)
    a("s_waitcnt lgkmcnt(%d)" % (D - WE))
    mf = []
    def add_frag(accbase, t, breg, bfile, first, cinit):
        f = len(mf) // 2; b = aA + 4 * (f % NB)
        for u in range(2):
            cb = u ^ (t & 1)
            acc = accbase + (t * 2 + cb) * 4
            if first: c = cinit(cb)
            else: c = "v[%d:%d]" % (acc, acc + 3)
            r = breg + cb * 4
            mf.append("v_mfma_f32_16x16x32_bf16 v[%d:%d], a[%d:%d], %s[%d:%d], %s" % (acc, acc + 3, b, b + 3, bfile, r, r + 3, c))
    for blk in range(8):
        ci = (lambda cb: "0") if blk < 2 else (lambda cb: "v[%d:%d]" % (vNEG + 4 * cb, vNEG + 4 * cb + 3))
        for ks in range(14):
            for t in range(4):
                add_frag(vS[blk & 1], t, aH + ks * 8, "a", ks == 0, ci)
    for ob in range(7):
        for s in range(16):
            for t in range(4):
                add_frag(vS[ob & 1], t, vP + s * 8, "v", s == 0, lambda cb: "0")
    NM = len(mf)
    assert NM == 2 * NF
    S = Slots(NM)
    for f in range(NF):
        if f + D < NF: S.set_first(2 * f, read_op(f + D))
        if (f + 1) % WE == 0 and f + 1 < NF:
            n = min(f + D, NF - 1) - min(f + WE, NF - 1)
            S.set_first(2 * f + 1, Op("s_waitcnt lgkmcnt(%d)" % n))
    for c in range(1, NF // SL):
        g = 2 * (c * SL - D) - 1
        S.extra[g] += [Op("", ("vmw", c)), Op("", ("bar", c))]
        S.cap[g] = 0
    if PROG:
        for ks in range(1, 14):
            g = 2 * (4 * ks) - 1
            S.extra[g] += [Op("", ("hw", ks))]
    S.place_s(dma_ops(NS - 1), 0, 2 * (SL - D) - 1)
    for c in range(2, NF // SL):
        g0 = 2 * (c * SL - D)
        S.place_s(dma_ops(c - 2 + NS), g0, min(g0 + 2 * SL - 1, NM))
    def xlane(reg, tmp, op):
        return [Op("v_mov_b32 v%d, v%d" % (tmp, reg)),
                Op("v_permlane32_swap_b32 v%d, v%d" % (reg, tmp)),
                Op("%s v%d, v%d, v%d" % (op, reg, reg, tmp)),
                Op("v_mov_b32 v%d, v%d" % (tmp, reg)),
                Op("v_permlane16_swap_b32 v%d, v%d" % (reg, tmp)),
                Op("%s v%d, v%d, v%d" % (op, reg, reg, tmp))]
    def zipl(x, y): return [o for p in zip(x, y) for o in p]
    def vals(blk, cb):
        s = vS[blk & 1]
        return [s + (t * 2 + cb) * 4 + r for t in range(4) for r in range(4)]
    def max_ops():
        ops = []
        for cb in range(2):
            v = vals(0, cb); m = vT + cb
            ops.append(Op("v_max3_f32 v%d, v%d, v%d, v%d" % (m, v[0], v[1], v[2])))
            for j in range(3, 15, 2):
                ops.append(Op("v_max3_f32 v%d, v%d, v%d, v%d" % (m, m, v[j], v[j + 1])))
            ops.append(Op("v_max_f32 v%d, v%d, v%d" % (m, m, v[15])))
        ops += zipl(xlane(vT, vT + 2, "v_max_f32"), xlane(vT + 1, vT + 3, "v_max_f32"))
        for cb in range(2):
            ops.append(Op("v_sub_f32 v%d, %s, v%d" % (vNEG + 4 * cb, f2h(-b0), vT + cb)))
        return ops
    def rep_ops():
        return [Op("v_mov_b32 v%d, v%d" % (vNEG + 4 * cb + r, vNEG + 4 * cb)) for cb in range(2) for r in range(1, 4)]
    def exp_ops(blk):
        seq = []
        for half in range(2):
            for cb in range(2):
                v = vals(blk, cb)[8 * half: 8 * half + 8]
                l = vL + cb
                for j in range(8):
                    r = v[j]
                    if blk < 2: seq.append(Op("v_add_f32 v%d, v%d, v%d" % (r, r, vNEG + 4 * cb)))
                    seq.append(Op("v_exp_f32 v%d, v%d" % (r, r)))
                    if blk == 0 and half == 0 and j == 0: pass
                    elif blk == 0 and half == 0 and j == 1: seq.append(Op("v_add_f32 v%d, v%d, v%d" % (l, v[0], r)))
                    else: seq.append(Op("v_add_f32 v%d, v%d, v%d" % (l, l, r)))
                    if j & 1: seq.append(Op("v_cvt_pk_bf16_f32 v%d, v%d, v%d" % (vP + ((2 * blk + half) * 2 + cb) * 4 + j // 2, v[j - 1], r)))
        return seq
    def fin_ops():
        ops = zipl(xlane(vL, vT + 2, "v_add_f32"), xlane(vL + 1, vT + 3, "v_add_f32"))
        ops += [Op("v_rcp_f32 v%d, v%d" % (vRL, vL)), Op("v_rcp_f32 v%d, v%d" % (vRL + 1, vL + 1)),
                Op("v_mul_f32 v%d, %s, v%d" % (vRL, f2h(2.0 ** -NSCALE), vRL)), Op("v_mul_f32 v%d, %s, v%d" % (vRL + 1, f2h(2.0 ** -NSCALE), vRL + 1))]
        return ops
    def epi_ops(ob):
        ops = []
        for half in range(2):
            for cb in range(2):
                v = vals(ob, cb)[8 * half: 8 * half + 8]
                y = vY + (half * 2 + cb) * 4
                off = cb * 14 * 1024 + (2 * ob + half) * 1024
                for j in range(8):
                    ops.append(Op("v_mul_f32 v%d, v%d, v%d" % (v[j], vRL + cb, v[j])))
                for j in range(4):
                    ops.append(Op("v_cvt_pk_bf16_f32 v%d, v%d, v%d" % (y + j, v[2 * j], v[2 * j + 1])))
                ops.append(Op("buffer_store_dwordx4 v[%d:%d], v%d, s[%d:%d], s%d offen offset:%d %s" % (y, y + 3, vO, sW, sW + 3, sST + (off >> 12), off & 4095, STFLAGS), ("st", off)))
        return ops
    tail = []
    if not NOVALU:
        G = 112
        S.place_or_grow(max_ops() + exp_ops(0) + rep_ops(), G + 3, 2 * G - 2, asap=True)
        for blk in range(1, 7):
            S.place_or_grow(exp_ops(blk), (blk + 1) * G + 3, (blk + 2) * G - 2)
        p = 896
        S.place_or_grow(exp_ops(7), p + 3, p + 14 * 8 - 2)
        S.place_or_grow(fin_ops(), p + 14 * 8 - 2, p + 128 + 3, asap=True)
        for ob in range(6):
            e = p + 128 * (ob + 1)
            S.place_or_grow(epi_ops(ob), e + 4, e + 126, look=16, frac=0.75)
        tail = [Op("s_nop 7")] + epi_ops(6)
    for i in range(NM):
        a(mf[i])
        if S.first[i] is not None: emit(S.first[i])
        for o in S.extra[i]: emit(o)
        for o in S.valu[i]: emit(o)
        if STAMP and i == 895:
            a("s_memrealtime s[48:49]"); a("s_memtime s[50:51]")
    for o in tail: emit(o)
    if STAMP:
        a("s_memrealtime s[52:53]"); a("s_memtime s[54:55]")
        a("s_waitcnt vmcnt(0)")
        a("s_memrealtime s[56:57]"); a("s_memtime s[58:59]")
        a("s_waitcnt lgkmcnt(0)")
        a("s_lshl_b32 s7, s2, 2"); a("s_add_u32 s7, s7, s6"); a("s_lshl_b32 s7, s7, 7"); a("s_add_u32 s7, s7, %d" % WS_TS)
        for j in range(20):
            a("v_mov_b32 v%d, s%d" % (j, 40 + j))
        a("v_mov_b32 v20, s7")
        a("s_mov_b64 exec, 1")
        for j in range(5):
            a("buffer_store_dwordx4 v[%d:%d], v20, s[%d:%d], 0 offen offset:%d" % (4 * j, 4 * j + 3, sW, sW + 3, 16 * j))
    a.label(name + "_end")
    a("s_endpgm")
    over = S.over
    return a.text(), kernel_desc(name, 232, aA + 4 * NB, 64), (name, 256, 256, SL * NS * 1024), over

if __name__ == "__main__":
    import sys, json
    opt = json.loads(sys.argv[2]) if len(sys.argv) > 2 else {}
    body, desc, launch, mu = gen_k1("k1_kernel", opt)
    open(sys.argv[1], "w").write(file_text([launch], [body], [desc]))
    print("overfull gaps", mu)
```

```python
from common import *
from k0 import f2h, xrow_sum, unpack8

def gen_k2(name, opt=None):
    opt = opt or {}
    a = Asm(); kernel_head(a, name)
    L = lambda s: "%s_%s" % (name, s)
    a("s_cmp_ge_u32 s2, %d" % (256 + 196)); a("s_cbranch_scc1 %s" % L("end"))
    a("s_load_dwordx2 s[4:5], s[0:1], %d" % KA_X)
    a("s_load_dwordx4 s[8:11], s[0:1], %d" % KA_W1)
    a("s_load_dwordx2 s[6:7], s[0:1], %d" % KA_WS)
    a("v_lshrrev_b32 v1, 6, v0"); a("v_and_b32 v2, 63, v0")
    a("v_readfirstlane_b32 s3, v1")
    sX, sW, sT = 16, 20, 24
    a("s_waitcnt lgkmcnt(0)")
    srd(a, sX, 4, 1835008); srd(a, sW, 6, WS_BYTES)
    a("s_cmp_ge_u32 s2, 256"); a("s_cbranch_scc1 %s" % L("tr"))
    a("v_and_b32 v3, 7, v0"); a("v_lshrrev_b32 v4, 3, v0")
    a("v_lshlrev_b32 v5, 8, v4"); a("v_lshl_add_u32 v5, v3, 4, v5")
    a("s_lshr_b32 s12, s2, 1"); a("s_mul_i32 s12, s12, 14336"); a("s_and_b32 s13, s2, 1"); a("s_lshl_b32 s13, s13, 7"); a("s_add_u32 s12, s12, s13")
    a("s_add_u32 s13, s12, %d" % WS_YP)
    vY = 32
    for h in range(16):
        a("buffer_load_dwordx4 v[%d:%d], v5, s[%d:%d], s13 offen" % (vY + 4 * h, vY + 4 * h + 3, sW, sW + 3))
        if h < 15: a("s_add_u32 s13, s13, %d" % (128 * 14336))
    a("v_mul_u32_u24 v6, 896, v3"); a("v_lshl_add_u32 v6, v4, 4, v6")
    a("s_mul_i32 s13, s2, %d" % (8 * 896))
    a("buffer_load_dwordx4 v[8:11], v6, s[%d:%d], s13 offen" % (sX, sX + 3))
    a("v_lshlrev_b32 v7, 5, v4")
    a("s_mov_b32 s13, %d" % (WS_MOD + 2 * 1792))
    vG, vSB, vCB = 96, 104, 112
    for k, r in enumerate((vG, vSB, vCB)):
        a("buffer_load_dwordx4 v[%d:%d], v7, s[%d:%d], s13 offen offset:%d" % (r, r + 3, sW, sW + 3, k * 1792))
        a("buffer_load_dwordx4 v[%d:%d], v7, s[%d:%d], s13 offen offset:%d" % (r + 4, r + 7, sW, sW + 3, k * 1792 + 16))
    vA = 16
    for h in range(16):
        a("s_waitcnt vmcnt(%d)" % (15 - h + 7))
        if h == 0: unpack8(a, vA, vY)
        else:
            unpack8(a, 24, vY + 4 * h)
            for j in range(8): a("v_add_f32 v%d, v%d, v%d" % (vA + j, vA + j, 24 + j))
    a("s_waitcnt vmcnt(4)")
    unpack8(a, 24, 8)
    for j in range(8): a("v_fma_f32 v%d, v%d, v%d, v%d" % (vA + j, vA + j, vG + j, 24 + j))
    for j in range(4): a("v_cvt_pk_bf16_f32 v%d, v%d, v%d" % (32 + j, vA + 2 * j, vA + 2 * j + 1))
    a("s_add_u32 s13, s12, %d" % WS_X1)
    a("buffer_store_dwordx4 v[32:35], v5, s[%d:%d], s13 offen" % (sW, sW + 3))
    a("v_lshlrev_b32 v12, 5, v3")
    a("s_lshl_b32 s14, s3, 2"); a("v_add_u32 v13, s14, v12")
    def rowsum(r, pas):
        a("s_nop 1")
        a("v_add_f32_dpp v%d, v%d, v%d row_ror:8 row_mask:0xf bank_mask:0xf" % (r, r, r))
        xrow_sum(a, [r], [r + 1])
        a("ds_write_b32 v13, v%d offset:%d" % (r, pas * 256))
        a("s_waitcnt lgkmcnt(0)"); a("s_barrier")
        a("ds_read_b128 v[40:43], v12 offset:%d" % (pas * 256)); a("ds_read_b96 v[44:46], v12 offset:%d" % (pas * 256 + 16))
        a("s_waitcnt lgkmcnt(0)")
        a("v_add_f32 v40, v40, v41"); a("v_add_f32 v42, v42, v43"); a("v_add_f32 v44, v44, v45"); a("v_add_f32 v40, v40, v42"); a("v_add_f32 v44, v44, v46")
        a("v_add_f32 v%d, v40, v44" % r)
    a("v_add_f32 v36, v%d, v%d" % (vA, vA + 1))
    for j in range(2, 8): a("v_add_f32 v36, v36, v%d" % (vA + j))
    rowsum(36, 0)
    a("v_mul_f32 v36, %s, v36" % f2h(1.0 / 448))
    for j in range(8): a("v_sub_f32 v%d, v%d, v36" % (vA + j, vA + j))
    a("v_mul_f32 v36, v%d, v%d" % (vA, vA))
    for j in range(1, 8): a("v_fmac_f32 v36, v%d, v%d" % (vA + j, vA + j))
    rowsum(36, 1)
    a("v_mov_b32 v37, %s" % f2h(1e-5)); a("v_fmac_f32 v37, %s, v36" % f2h(1.0 / 448))
    a("v_rsq_f32 v36, v37")
    a("s_waitcnt vmcnt(1)")
    for j in range(8): a("v_add_f32 v%d, 1.0, v%d" % (vCB + j, vCB + j))
    for j in range(8): a("v_mul_f32 v%d, v%d, v36" % (vA + j, vA + j))
    for j in range(8): a("v_fma_f32 v%d, v%d, v%d, v%d" % (vA + j, vA + j, vCB + j, vSB + j))
    for j in range(4): a("v_cvt_pk_bf16_f32 v%d, v%d, v%d" % (40 + j, vA + 2 * j, vA + 2 * j + 1))
    a("s_add_u32 s13, s12, %d" % WS_H2)
    a("buffer_store_dwordx4 v[40:43], v5, s[%d:%d], s13 offen" % (sW, sW + 3))
    a("s_endpgm")
    a.label(L("tr"))
    a("s_cmp_ge_u32 s3, 4"); a("s_cbranch_scc1 %s" % L("end"))
    a("s_sub_u32 s12, s2, 256"); a("s_lshl_b32 s12, s12, 2"); a("s_add_u32 s12, s12, s3")
    a("s_cmp_ge_u32 s12, 392")
    a("s_cselect_b32 s28, s10, s8"); a("s_cselect_b32 s29, s11, s9")
    a("s_mov_b32 s30, 3584"); a("s_cmov_b32 s30, 896")
    a("s_cselect_b32 s31, 392, 0")
    a("s_mov_b32 s33, %d" % WS_W1); a("s_cmov_b32 s33, %d" % WS_W2)
    a("s_cselect_b32 s34, 56, 14")
    a("s_mov_b32 s35, %d" % ((2 ** 32 + 27) // 28)); a("s_cmov_b32 s35, %d" % ((2 ** 32 + 6) // 7))
    a("s_cselect_b32 s36, 7, 28")
    srd(a, sT, 28, 448 * 1792 * 2)
    a("s_sub_u32 s12, s12, s31")
    a("s_mul_hi_u32 s13, s12, s35")
    a("s_mul_i32 s14, s13, s36"); a("s_sub_u32 s14, s12, s14")
    a("v_lshrrev_b32 v3, 3, v2"); a("v_and_b32 v4, 7, v2")
    a("v_mul_lo_u32 v5, v3, s30"); a("v_lshl_add_u32 v5, v4, 4, v5")
    a("s_lshl_b32 s15, s13, 5"); a("s_mul_i32 s15, s15, s30"); a("s_lshl_b32 s37, s14, 7"); a("s_add_u32 s15, s15, s37")
    a("s_lshl_b32 s37, s30, 3")
    for j in range(4):
        a("buffer_load_dwordx4 v[%d:%d], v5, s[%d:%d], s15 offen" % (8 + 4 * j, 11 + 4 * j, sT, sT + 3))
        if j < 3: a("s_add_u32 s15, s15, s37")
    RS = 144
    a("s_mul_i32 s38, s3, %d" % (32 * RS))
    a("v_mul_u32_u24 v6, %d, v3" % RS); a("v_lshl_add_u32 v6, v4, 4, v6"); a("v_add_u32 v6, s38, v6")
    a("v_lshrrev_b32 v7, 4, v2"); a("v_bfe_u32 v24, v2, 2, 2"); a("v_lshl_add_u32 v7, v7, 3, v24"); a("v_mul_u32_u24 v7, %d, v7" % RS)
    a("v_and_b32 v24, 3, v2"); a("v_lshl_add_u32 v7, v24, 4, v7"); a("v_add_u32 v7, s38, v7")
    for j in range(4):
        a("s_waitcnt vmcnt(%d)" % (3 - j))
        a("ds_write_b128 v6, v[%d:%d] offset:%d" % (8 + 4 * j, 11 + 4 * j, j * 8 * RS))
    a("s_waitcnt lgkmcnt(0)")
    for t in range(4):
        for hh in range(2):
            a("ds_read_b64_tr_b16 v[%d:%d], v7 offset:%d" % (32 + 4 * t + 2 * hh, 33 + 4 * t + 2 * hh, 4 * hh * RS + (t >> 1) * 64 + (t & 1) * 8))
    a("s_mul_i32 s15, s14, s34"); a("s_add_u32 s15, s15, s13"); a("s_lshl_b32 s15, s15, 12"); a("s_add_u32 s15, s15, s33")
    a("v_lshlrev_b32 v5, 4, v2")
    for t in range(4):
        a("s_waitcnt lgkmcnt(%d)" % (6 - 2 * t))
        a("buffer_store_dwordx4 v[%d:%d], v5, s[%d:%d], s15 offen offset:%d" % (32 + 4 * t, 35 + 4 * t, sW, sW + 3, t * 1024))
    a.label(L("end")); a("s_endpgm")
    return a.text(), kernel_desc(name, 120, 0, 48), (name, 256 + 196, 448, 4 * 32 * RS)
```

```python
from common import *
from k0 import f2h, unpack8

def gen_k3(name, opt=None):
    opt = opt or {}
    a = Asm(); kernel_head(a, name)
    L = lambda s: "%s_%s" % (name, s)
    a("s_cmp_ge_u32 s2, 224"); a("s_cbranch_scc1 %s" % L("end"))
    a("s_load_dwordx2 s[4:5], s[0:1], %d" % KA_WS)
    a("v_lshrrev_b32 v1, 6, v0"); a("v_and_b32 v2, 63, v0"); a("v_readfirstlane_b32 s3, v1")
    a("v_lshlrev_b32 v3, 4, v2"); a("v_add_u32 v4, 0x10000, v3")
    a("s_and_b32 s6, s2, 7"); a("s_lshl_b32 s6, s6, 1"); a("s_bfe_u32 s7, s2, 0x10003"); a("s_add_u32 s6, s6, s7")
    a("s_lshr_b32 s7, s2, 4")
    a("s_lshl_b32 s6, s6, 2"); a("s_add_u32 s6, s6, s3")
    sW = 16
    a("s_mul_i32 s8, s6, 28672"); a("s_add_u32 s8, s8, %d" % WS_H2)
    a("s_mul_i32 s9, s7, %d" % (112 * 1024)); a("s_add_u32 s9, s9, %d" % WS_W1)
    a("s_lshl_b32 s10, s3, 10"); a("s_add_u32 s9, s9, s10")
    a("s_waitcnt lgkmcnt(0)")
    srd(a, sW, 4, WS_BYTES)
    vH = 96
    vA = 72
    vD = 8
    for ks in range(14):
        for blk in range(2):
            off = (blk * 56 + ks * 4) * 1024
            a("s_add_u32 m0, s10, %d" % off); a("s_add_u32 s11, s9, %d" % off)
            a("buffer_load_dwordx4 v3, s[%d:%d], s11 offen lds" % (sW, sW + 3))
        for cb in range(2):
            off = (cb * 14 + ks) * 1024; r = vH + (ks * 2 + cb) * 4
            a("s_add_u32 s11, s8, %d" % (off & ~4095))
            a("buffer_load_dwordx4 v[%d:%d], v3, s[%d:%d], s11 offen offset:%d" % (r, r + 3, sW, sW + 3, off & 4095))
    GR = opt.get("gr", 2)
    frs = [(ks, t8) for ks in range(14) for t8 in range(8)]
    def rd(n):
        ks, t8 = frs[n]; off = ((t8 >> 2) * 56 + ks * 4 + (t8 & 3)) * 1024; b = vA + 4 * (n % 6)
        a("ds_read_b128 v[%d:%d], v%d offset:%d" % (b, b + 3, 3 if off < 65536 else 4, off & 0xffff))
    DD = 4
    issued = 0
    for n, (ks, t8) in enumerate(frs):
        if t8 == 0 and ks % GR == 0:
            a("s_waitcnt vmcnt(%d)" % (4 * (14 - min(ks + GR, 14)))); a("s_barrier")
        lim = min((ks // GR + 1) * GR, 14) * 8
        while issued < min(n + DD + 1, lim): rd(issued); issued += 1
        a("s_waitcnt lgkmcnt(%d)" % (issued - n - 1))
        b = vA + 4 * (n % 6)
        for u in range(2):
            cb = u ^ (t8 & 1); acc = vD + (t8 * 2 + cb) * 4; r = vH + (ks * 2 + cb) * 4
            c = "0" if ks == 0 else "v[%d:%d]" % (acc, acc + 3)
            a("v_mfma_f32_16x16x32_bf16 v[%d:%d], v[%d:%d], v[%d:%d], %s" % (acc, acc + 3, b, b + 3, r, r + 3, c))
    a("s_nop 7")
    a("s_mul_i32 s8, s6, %d" % (2 * 56 * 1024)); a("s_lshl_b32 s9, s7, 12"); a("s_add_u32 s8, s8, s9"); a("s_add_u32 s8, s8, %d" % WS_HH)
    a("s_add_u32 s9, s8, %d" % (56 * 1024))
    for pr in range(4):
        for cb in range(2):
            src = [vD + ((2 * pr) * 2 + cb) * 4 + r for r in range(4)] + [vD + ((2 * pr + 1) * 2 + cb) * 4 + r for r in range(4)]
            o = vH + (pr * 2 + cb) * 4
            for r in src: a("v_max_f32 v%d, 0, v%d" % (r, r))
            for j in range(4): a("v_cvt_pk_bf16_f32 v%d, v%d, v%d" % (o + j, src[2 * j], src[2 * j + 1]))
            a("buffer_store_dwordx4 v[%d:%d], v3, s[%d:%d], s%d offen offset:%d" % (o, o + 3, sW, sW + 3, 8 + cb, pr * 1024))
    a.label(L("end")); a("s_endpgm")
    return a.text(), kernel_desc(name, 208, 0, 32), (name, 224, 256, 112 * 1024)

def gen_k4(name, opt=None):
    opt = opt or {}
    a = Asm(); kernel_head(a, name)
    L = lambda s: "%s_%s" % (name, s)
    a("s_cmp_ge_u32 s2, 224"); a("s_cbranch_scc1 %s" % L("end"))
    a("s_load_dwordx2 s[4:5], s[0:1], %d" % KA_WS)
    a("s_load_dwordx2 s[12:13], s[0:1], %d" % KA_OUT)
    a("v_lshrrev_b32 v1, 6, v0"); a("v_and_b32 v2, 63, v0"); a("v_readfirstlane_b32 s3, v1")
    a("v_lshlrev_b32 v3, 4, v2")
    a("s_and_b32 s6, s2, 7"); a("s_lshl_b32 s6, s6, 2"); a("s_bfe_u32 s7, s2, 0x20003"); a("s_add_u32 s6, s6, s7")
    a("s_lshr_b32 s7, s2, 5")
    sW, sO = 16, 20
    a("s_mul_i32 s8, s7, %d" % (224 * 1024)); a("s_mul_i32 s9, s3, %d" % (56 * 1024)); a("s_add_u32 s8, s8, s9"); a("s_add_u32 s8, s8, %d" % WS_W2)
    a("s_mul_i32 s9, s6, %d" % (4 * 56 * 1024)); a("s_mul_i32 s10, s3, %d" % (14 * 1024)); a("s_add_u32 s9, s9, s10"); a("s_add_u32 s9, s9, %d" % WS_HH)
    for cb in range(4): a("v_add_u32 v%d, %d, v3" % (4 + cb, cb * 56 * 1024))
    a("s_waitcnt lgkmcnt(0)")
    srd(a, sW, 4, WS_BYTES); srd(a, sO, 12, 1835008)
    NBUF = 7
    vD = 8
    def buf(ks, k):
        return (ks % NBUF) * 32 + 4 * k
    def load(ks):
        a("s_add_u32 s11, s8, %d" % (ks * 4096))
        for t in range(4):
            r = buf(ks, t)
            a("buffer_load_dwordx4 a[%d:%d], v3, s[%d:%d], s11 offen offset:%d" % (r, r + 3, sW, sW + 3, t * 1024))
        a("s_add_u32 s11, s9, %d" % ((ks * 1024) & ~4095))
        for cb in range(4):
            r = buf(ks, 4 + cb)
            a("buffer_load_dwordx4 a[%d:%d], v%d, s[%d:%d], s11 offen offset:%d" % (r, r + 3, 4 + cb, sW, sW + 3, (ks * 1024) & 4095))
    for ks in range(NBUF): load(ks)
    for ks in range(14):
        issued = min(ks + NBUF, 14)
        a("s_waitcnt vmcnt(%d)" % (8 * (issued - ks - 1)))
        for t in range(4):
            for u in range(4):
                cb = u if t % 2 == 0 else 3 - u
                acc = vD + (t * 4 + cb) * 4; A = buf(ks, t); B = buf(ks, 4 + cb)
                c = "0" if ks == 0 else "v[%d:%d]" % (acc, acc + 3)
                a("v_mfma_f32_16x16x32_bf16 v[%d:%d], a[%d:%d], a[%d:%d], %s" % (acc, acc + 3, A, A + 3, B, B + 3, c))
        if ks + NBUF < 14: load(ks + NBUF)
    a("s_lshl_b32 s10, s6, 2"); a("s_add_u32 s10, s10, s3")
    a("s_mul_i32 s11, s10, 14336"); a("s_lshl_b32 s14, s7, 11"); a("s_add_u32 s11, s11, s14"); a("s_add_u32 s11, s11, %d" % WS_X1)
    a("buffer_load_dwordx4 v[72:75], v3, s[%d:%d], s11 offen" % (sW, sW + 3))
    a("buffer_load_dwordx4 v[76:79], v3, s[%d:%d], s11 offen offset:1024" % (sW, sW + 3))
    a("v_lshrrev_b32 v4, 4, v2"); a("v_lshlrev_b32 v5, 5, v4")
    a("s_lshl_b32 s14, s7, 8"); a("s_add_u32 s14, s14, %d" % (WS_MOD + 5 * 1792))
    for pr in range(2):
        for hh in range(2):
            a("buffer_load_dwordx4 v[%d:%d], v5, s[%d:%d], s14 offen offset:%d" % (80 + 8 * pr + 4 * hh, 83 + 8 * pr + 4 * hh, sW, sW + 3, pr * 128 + hh * 16))
    a("s_lshl_b32 s15, s3, 12"); a("v_add_u32 v6, s15, v3")
    a("s_nop 4")
    for cb in range(4):
        for t in range(4):
            acc = vD + (t * 4 + cb) * 4
            a("ds_write_b128 v6, v[%d:%d] offset:%d" % (acc, acc + 3, cb * 16384 + t * 1024))
    a("s_waitcnt lgkmcnt(0)"); a("s_barrier")
    a("s_lshl_b32 s15, s3, 14"); a("v_add_u32 v6, s15, v3")
    for w in range(4):
        for t in range(4):
            r = vD + (w * 4 + t) * 4
            a("ds_read_b128 v[%d:%d], v6 offset:%d" % (r, r + 3, w * 4096 + t * 1024))
    a("v_and_b32 v7, 15, v2"); a("v_mul_u32_u24 v7, 896, v7"); a("v_lshl_add_u32 v7, v4, 4, v7")
    a("s_mul_i32 s10, s10, %d" % (16 * 896)); a("s_lshl_b32 s14, s7, 7"); a("s_add_u32 s10, s10, s14")
    a("s_waitcnt lgkmcnt(0)")
    for j in range(16):
        a("v_add_f32 v%d, v%d, v%d" % (vD + j, vD + j, vD + 16 + j)); a("v_add_f32 v%d, v%d, v%d" % (vD + 32 + j, vD + 32 + j, vD + 48 + j))
    for j in range(16): a("v_add_f32 v%d, v%d, v%d" % (vD + j, vD + j, vD + 32 + j))
    a("s_waitcnt vmcnt(0)")
    for pr in range(2):
        unpack8(a, 40, 72 + 4 * pr)
        for j in range(8): a("v_fma_f32 v%d, v%d, v%d, v%d" % (40 + j, vD + 8 * pr + j, 80 + 8 * pr + j, 40 + j))
        for j in range(4): a("v_cvt_pk_bf16_f32 v%d, v%d, v%d" % (48 + 4 * pr + j, 40 + 2 * j, 41 + 2 * j))
        a("buffer_store_dwordx4 v[%d:%d], v7, s[%d:%d], s10 offen offset:%d" % (48 + 4 * pr, 51 + 4 * pr, sO, sO + 3, pr * 64))
    a.label(L("end")); a("s_endpgm")
    return a.text(), kernel_desc(name, 96, NBUF * 32, 32), (name, 224, 256, 65536)
```

```python
import re
def regs_of(tok):
    tok = tok.strip().lstrip('-')
    m = re.fullmatch(r"([vas])\[(\d+):(\d+)\]", tok)
    if m: return [m.group(1) + str(i) for i in range(int(m.group(2)), int(m.group(3)) + 1)]
    m = re.fullmatch(r"([vas])(\d+)", tok)
    if m: return [tok]
    if tok in ("vcc", "m0", "exec"): return [tok]
    return []
TRANS = ("v_exp_f32", "v_rcp_f32", "v_rsq_f32", "v_log_f32", "v_sqrt_f32")
class Op:
    def __init__(self, text, tag=None, kind=None):
        self.text = text; self.tag = tag
        name = text.split()[0] if text else ""
        self.name = name
        ops = [t for t in re.split(r",\s*|\s+", text[len(name):].strip()) if t] if text else []
        rs = [regs_of(t) for t in ops]
        if name.startswith("buffer_store") or name.startswith("ds_write") or name.startswith("global_store") or (name.startswith("buffer_load") and "lds" in ops):
            self.w = set(); self.r = set(sum(rs, []))
            if "lds" in ops: self.r.add("m0")
        elif name.startswith("v_permlane") and "swap" in name:
            self.w = set(sum(rs, [])); self.r = set(self.w)
        elif name.startswith("v_cmp"):
            self.w = set(rs[0]); self.r = set(sum(rs[1:], []))
        elif rs:
            self.w = set(rs[0]); self.r = set(sum(rs[1:], []))
            if name.startswith("v_fmac") : self.r |= self.w
        else:
            self.w = set(); self.r = set()
        if kind: self.kind = kind
        elif name in TRANS: self.kind = 'e'
        elif name.startswith("v_"): self.kind = 'v'
        elif name.startswith(("buffer_", "ds_", "global_")): self.kind = 'm'
        else: self.kind = 's'
    def cost(self): return 2 if self.kind == 'e' else 1

class Slots:
    def __init__(self, n, cap=2):
        self.n = n
        self.first = [None] * n
        self.extra = [[] for _ in range(n)]
        self.valu = [[] for _ in range(n)]
        self.cap = [cap] * n
        self.over = 0
        self.tdist = 1; self.vdist = 0
    def set_first(self, g, op):
        assert self.first[g] is None
        self.first[g] = op
        if op.kind == 'm':
            self.cap[g] -= 2 if op.name.startswith("buffer_store") else 1
    def place_s(self, ops, g0, g1):
        free = [g for g in range(g0, g1) if self.first[g] is None and not self.extra[g]]
        n = len(ops)
        assert len(free) >= n, (len(free), n, g0, g1)
        for k, o in enumerate(ops):
            self.set_first(free[(k * len(free)) // n], o)
    def place(self, ops, g0, g1, slack=2.0, look=10, asap=False, frac=0.92):
        n = len(ops)
        dep = [[] for _ in range(n)]
        for j in range(n):
            for i in range(j):
                a, b = ops[i], ops[j]
                raw = a.w & b.r; war = a.r & b.w; waw = a.w & b.w
                if not (raw or war or waw): continue
                d = 0
                if raw and a.kind == 'e': d = self.tdist
                if raw and a.kind == 'v' and b.kind in 've': d = max(d, self.vdist)
                if raw and b.name.startswith("v_permlane"): d = 2
                if raw and a.name.startswith("v_permlane"): d = 1
                if raw and b.kind in ('m', 's'): d = max(d, 1)
                if (war or waw) and b.kind in ('m', 's'): d = max(d, 1)
                if war and a.kind == 'm': d = max(d, 2)
                if raw and a.kind == 'm': d = 99999
                dep[j].append((i, d))
        at = [None] * n
        tot = sum(o.cost() for o in ops if o.kind in 've')
        capsum = frac * float(sum(max(self.cap[g], 0) for g in range(g0, g1)))
        acc = 0; done = 0; nxt = 0
        for g in range(g0, g1):
            acc += max(self.cap[g], 0)
            while True:
                while nxt < n and at[nxt] is not None: nxt += 1
                if nxt >= n: break
                cand = []
                cnt = 0
                for j in range(nxt, n):
                    if at[j] is not None: continue
                    cnt += 1
                    if cnt > look: break
                    if all(at[i] is not None and at[i] + d <= g for i, d in dep[j]): cand.append(j)
                pick = None
                for j in cand:
                    o = ops[j]
                    if o.kind in 'ms' and self.first[g] is None and not self.extra[g] and not self.valu[g]:
                        pick = j; break
                if pick is not None:
                    self.set_first(g, ops[pick]); at[pick] = g; continue
                budget_ok = lambda c: asap or done + c <= tot * acc / capsum + slack
                if self.cap[g] >= 2:
                    for j in cand:
                        if ops[j].kind == 'e' and budget_ok(2): pick = j; break
                if pick is None and self.cap[g] >= 1:
                    for j in cand:
                        if ops[j].kind == 'v' and budget_ok(1): pick = j; break
                if pick is None: break
                self.valu[g].append(ops[pick]); self.cap[g] -= ops[pick].cost(); done += ops[pick].cost(); at[pick] = g
        left = [j for j in range(n) if at[j] is None]
        return left
    def place_or_grow(self, ops, g0, g1, **kw):
        import copy
        add = 0
        while True:
            save = (copy.copy(self.first), [list(x) for x in self.valu], list(self.cap))
            if add:
                idx = [g0 + (k * (g1 - g0)) // add for k in range(add)] if add <= g1 - g0 else None
                assert idx is not None
                for g in idx: self.cap[g] += 1
            left = self.place(ops, g0, g1, **kw)
            if not left:
                self.over += add
                return add
            self.first, self.valu, self.cap = save
            add += max(1, len(left) // 2)
```

```python
import sys, json
from common import *
import k0, k1b, k2, k34
def build(opt=None):
    opt = opt or {}
    parts = [k0.gen_k0("k0_kernel", opt.get("k0")), k1b.gen_k1("k1_kernel", opt.get("k1"))[:3], k2.gen_k2("k2_kernel", opt.get("k2")),
             k34.gen_k3("k3_kernel", opt.get("k3")), k34.gen_k4("k4_kernel", opt.get("k4"))]
    launches = [p[2] for p in parts]
    bodies = [p[0] for p in parts]; descs = [p[1] for p in parts]
    for i in range(opt.get("empty", 0)):
        if i == 0:
            a = Asm(); kernel_head(a, "e_kernel"); a("s_endpgm")
            bodies.append(a.text()); descs.append(kernel_desc("e_kernel", 8, 0, 16))
        launches.append(("e_kernel", 256, 256, 0))
    return file_text(launches, bodies, descs)
if __name__ == "__main__":
    opt = json.loads(sys.argv[2]) if len(sys.argv) > 2 else {}
    open(sys.argv[1], "w").write(build(opt))
```

```python
from mega_common import *
vNH = 128
aWH = 160
vL0, vNA, vNA3, vWS = 250, 249, 251, 248
aXC = 176
vC5, vC6 = 246, 247

def phase_a(c, codesize_sym):
    a = c.a; L = c.L; opt = c.opt
    NT = opt.get("nt", "nt"); PUB = opt.get("pub", "sc1"); ROT = opt.get("rot", True)
    a("s_cmp_ge_u32 s2, 256"); a("s_cbranch_scc1 %s" % L("end"))
    a("s_getpc_b64 s[10:11]")
    a("v_lshlrev_b32 v1, 4, v0")
    a("s_lshr_b32 s%d, s2, 3" % sJ)
    a("s_and_b32 s12, s%d, 15" % sJ); a("s_lshl_b32 s12, s12, 12")
    a("v_add_u32 v1, s12, v1")
    a("v_min_u32 v1, %s, v1" % codesize_sym)
    a("global_load_dwordx4 a[184:187], v1, s[10:11]")
    TCH = opt.get("touch", 0)
    if TCH:
        a("v_and_b32 v32, 15, v0"); a("v_min_u32 v32, 12, v32"); a("v_lshlrev_b32 v33, 3, v32")
        a("global_load_dwordx2 v[34:35], v33, s[0:1]")
    a("s_load_dwordx16 s[64:79], s[0:1], 0")
    a("s_load_dwordx8 s[80:87], s[0:1], 64")
    a("s_load_dwordx2 s[88:89], s[0:1], 96")
    a("s_memrealtime s[14:15]")
    if opt.get("stamp"): a("v_mov_b32 v%d, 0" % vST)
    a("v_lshrrev_b32 v1, 6, v0"); a("v_and_b32 v%d, 63, v0" % vLANE)
    a("v_readfirstlane_b32 s%d, v1" % sWAVE)
    a("v_lshlrev_b32 v%d, 4, v%d" % (vL16, vLANE))
    a("v_and_b32 v3, 15, v%d" % vLANE); a("v_lshrrev_b32 v4, 4, v%d" % vLANE)
    a("s_and_b32 s%d, s2, 7" % sX)
    a("s_and_b32 s9, s%d, 1" % sJ); a("s_lshl_b32 s%d, s%d, 1" % (sHEAD, sX)); a("s_add_u32 s%d, s%d, s9" % (sHEAD, sHEAD))
    a("s_lshr_b32 s%d, s%d, 1" % (sT, sJ))
    sKQ, sCR, sC0, sROW, sKB, sLW16, sOB, sGI = 48, 49, 50, 51, 56, 57, 58, 59
    a("s_and_b32 s%d, s%d, 3" % (sKQ, sT)); a("s_lshr_b32 s%d, s%d, 2" % (sCR, sT))
    a("s_lshl_b32 s%d, s%d, 7" % (sC0, sCR)); a("s_min_u32 s%d, s%d, 352" % (sC0, sC0))
    a("s_sub_u32 s%d, s2, 128" % sGI)
    a("v_and_b32 v5, 3, v0"); a("v_lshrrev_b32 v6, 2, v0")
    a("v_mul_u32_u24 v7, 5376, v6"); a("v_lshl_add_u32 v7, v5, 4, v7")
    a("v_lshlrev_b32 v8, 1, v6")
    a("v_lshrrev_b32 v9, 5, v%d" % vLANE); a("v_and_b32 v10, 31, v%d" % vLANE); a("v_xor_b32 v10, v10, v9"); a("v_lshlrev_b32 v10, 4, v10")
    vKA, vQA = 16, 24
    a("v_lshl_add_u32 v12, v9, 9, v10"); a("v_lshl_add_u32 v13, v9, 13, v10")
    for g in range(4):
        if ROT: a("s_xor_b32 s9, s%d, %d" % (sCR, g))
        else: a("s_mov_b32 s9, %d" % g)
        a("s_lshl_b32 s%d, s9, 12" % (92 + g)); a("s_lshl_b32 s9, s9, 6")
        a("v_xor_b32 v%d, s9, v12" % (vKA + 2 * g)); a("v_xor_b32 v%d, 32, v%d" % (vKA + 2 * g + 1, vKA + 2 * g))
    a("s_cmp_ge_u32 s%d, 2" % sCR); a("s_cselect_b32 s12, 3, 4"); a("s_mul_i32 s13, s12, s%d" % sWAVE)
    for g in range(4):
        if ROT:
            a("s_add_u32 s9, s%d, %d" % (sKQ, g))
            for _ in range(2):
                a("s_cmp_ge_u32 s9, s12"); a("s_cselect_b32 s60, s12, 0"); a("s_sub_u32 s9, s9, s60")
        else: a("s_mov_b32 s9, %d" % g)
        a("s_add_u32 s%d, s9, s13" % (96 + g)); a("s_and_b32 s9, s%d, 3" % (96 + g)); a("s_lshl_b32 s9, s9, 6")
        a("v_xor_b32 v%d, s9, v13" % (vQA + 2 * g)); a("v_xor_b32 v%d, 32, v%d" % (vQA + 2 * g + 1, vQA + 2 * g))
    vOA = 11
    a("v_lshlrev_b32 v12, 2, v4"); a("v_xor_b32 v12, v12, v3"); a("v_lshlrev_b32 v12, 4, v12")
    a("v_mul_u32_u24 v%d, 896, v4" % vOA); a("v_add_u32 v%d, v%d, v12" % (vOA, vOA))
    a("s_lshl_b32 s%d, s%d, 5" % (sROW, sX)); a("s_add_u32 s%d, s%d, s%d" % (sROW, sROW, sJ)); a("s_lshl_b32 s%d, s%d, 3" % (sROW, sROW))
    a("s_lshl_b32 s9, s%d, 1" % sWAVE); a("s_add_u32 s%d, s%d, s9" % (sROW, sROW))
    a("s_lshl_b32 s%d, s%d, 20" % (sKB, sX)); a("s_lshl_b32 s9, s%d, 16" % sKQ); a("s_add_u32 s%d, s%d, s9" % (sKB, sKB))
    a("s_lshl_b32 s%d, s%d, 14" % (sLW16, sWAVE)); a("s_add_u32 s%d, s%d, s%d" % (sKB, sKB, sLW16)); a("s_add_u32 s%d, s%d, %d" % (sKB, sKB, 1536 * 512))
    if TCH:
        sizes = [1835008, 8388608, 8388608, 3670016, 3670016, 4, 1605632, 1605632, 4, 2408448, 1835008, 4, 4]
        a("v_mov_b32 v36, 0")
        for i, sz in enumerate(sizes):
            if sz > 4:
                a("v_mov_b32 v37, %d" % (sz - 4)); a("v_cmp_eq_u32 vcc, %d, v32" % i); a("s_nop 1"); a("v_cndmask_b32 v36, v36, v37, vcc")
        a("v_lshlrev_b32 v37, 20, v4")
        a("v_mov_b32 v38, s%d" % sKB); a("v_cmp_lt_u32 vcc, 0x400000, v36"); a("s_nop 1"); a("v_cndmask_b32 v37, v37, v38, vcc")
        a("v_min_u32 v37, v37, v36")
        a("s_waitcnt vmcnt(0)")
        a("v_add_co_u32 v34, vcc, v34, v37"); a("s_nop 1"); a("v_addc_co_u32 v35, vcc, 0, v35, vcc")
        a("global_load_dword v240, v[34:35], off")
    a("s_waitcnt lgkmcnt(0)")
    if TCH:
        a("v_lshlrev_b32 v36, %d, v0" % (20 if TCH == 1 else 19)); a("v_min_u32 v36, %d, v36" % WS_TS)
        a("global_load_dword v241, v36, s[%d:%d]" % (pWS, pWS + 1))
    if opt.get("stamp"):
        a("v_writelane_b32 v%d, s14, 0" % vST); c.ns = 1
    a("s_or_b32 s%d, s14, 1" % sTAG)
    sXs, sR, sLq, sCc, sM, sV, sLo = 24, 28, 32, 36, 40, 44, 52
    srd(a, sD, pDBG, 256); srd(a, sCc, pC, 896); srd(a, sM, pWM, 448 * 2688 * 2); srd(a, sXs, pX, 1835008)
    srd(a, sR, pK, 8388608); srd(a, sLq, pWQ, 448 * 4096 * 2); srd(a, sW, pWS, WS_BYTES)
    vW, vC, vX = 64, 92, 100
    a("s_cmp_ge_u32 s%d, 84" % sGI); a("s_cbranch_scc1 %s" % L("nogl"))
    a("v_mov_b32 v13, s%d" % sTAG)
    a("s_lshl_b32 s9, s%d, 2" % sGI); a("s_cmp_ge_u32 s%d, 28" % sGI); a("s_cselect_b32 s9, 256, s9")
    a("v_lshlrev_b32 v14, 8, v0"); a("v_add_u32 v14, s9, v14")
    a("buffer_store_dword v13, v14, s[%d:%d], 0 offen sc1" % (sD, sD + 3))
    a("s_lshl_b32 s9, s%d, 6" % sGI)
    for i in range(7):
        a("buffer_load_dwordx4 v[%d:%d], v7, s[%d:%d], s9 offen %s" % (vW + 4 * i, vW + 4 * i + 3, sM, sM + 3, opt.get("gnt", NT)))
        if i < 6: a("s_add_u32 s9, s9, %d" % (64 * 5376))
    for i in range(7):
        a("buffer_load_ushort v%d, v8, s[%d:%d], 0 offen offset:%d" % (vC + i, sCc, sCc + 3, 128 * i))
    a.label(L("nogl"))
    a("s_mul_i32 s9, s%d, 896" % sROW)
    a("buffer_load_dwordx4 v[%d:%d], v%d, s[%d:%d], s9 offen %s" % (vX, vX + 3, vL16, sXs, sXs + 3, NT))
    a("buffer_load_dwordx4 v[%d:%d], v%d, s[%d:%d], s9 offen offset:896 %s" % (vX + 4, vX + 7, vL16, sXs, sXs + 3, NT))
    def dma_kv(srdn, g):
        a("s_add_u32 m0, s%d, s%d" % (sLW16, 92 + g)); a("s_add_u32 s9, s%d, s%d" % (sKB, 92 + g))
        for k in range(4):
            a("buffer_load_dwordx4 v%d, s[%d:%d], s9 offen offset:%d %s lds" % (vKA + 2 * g + (k & 1), srdn, srdn + 3, k * 1024, NT))
    a("s_lshl_b32 s10, s%d, 13" % sC0); a("s_lshl_b32 s11, s%d, 9" % sHEAD); a("s_add_u32 s10, s10, s11")
    def dma_wq(g):
        a("s_lshl_b32 s9, s%d, 12" % (96 + g)); a("s_add_u32 m0, s9, 65536")
        a("s_lshl_b32 s11, s%d, 16" % (96 + g)); a("s_add_u32 s11, s11, s10")
        for k in range(4):
            if k: a("s_add_u32 s11, s11, %d" % (16384 - 1024))
            a("buffer_load_dwordx4 v%d, s[%d:%d], s11 offen offset:%d %s lds" % (vQA + 2 * g + (k & 1), sLq, sLq + 3, k * 1024, NT))
    NE = 3
    dma_kv(sR, 0); dma_wq(0); dma_kv(sR, 1)
    LDSX = 131072
    vMOD, vMA = 62, 15
    a("s_cmp_ge_u32 s%d, 84" % sGI); a("s_cbranch_scc1 %s" % L("nogc"))
    if opt.get("gst"): c.stamp()
    a("s_waitcnt vmcnt(%d)" % (2 + 4 * NE))
    if opt.get("gst"): c.stamp()
    for i in range(7): a("v_lshlrev_b32 v%d, 16, v%d" % (vC + i, vC + i))
    for i in range(7): a("v_mul_f32 v%d, %s, v%d" % (32 + i, f2h(-math.log2(math.e)), vC + i))
    for i in range(7): a("v_exp_f32 v%d, v%d" % (32 + i, 32 + i))
    for i in range(7): a("v_add_f32 v%d, 1.0, v%d" % (32 + i, 32 + i))
    for i in range(7): a("v_rcp_f32 v%d, v%d" % (32 + i, 32 + i))
    for i in range(7): a("v_mul_f32 v%d, v%d, v%d" % (32 + i, 32 + i, vC + i))
    for i in range(7): a("v_cvt_pk_bf16_f32 v%d, v%d, 0" % (vC + i, 32 + i))
    for i in range(7): a("v_lshlrev_b32 v%d, 16, v%d" % (40 + i, vC + i))
    for j in range(8): a("v_mov_b32 v%d, 0" % (32 + j))
    dma_wq(1)
    for i in range(7):
        for j in range(8):
            a("v_dot2c_f32_bf16 v%d, v%d, v%d" % (32 + j, (40 + i) if j & 1 else (vC + i), vW + 4 * i + j // 2))
    dma_kv(sR, 2)
    R8 = list(range(32, 40))
    dpp_add(a, R8, "row_ror:4"); dpp_add(a, R8, "row_ror:8"); xrow(a, R8, list(range(40, 48)))
    a("s_lshl_b32 s9, s%d, 7" % sWAVE); a("s_add_u32 s9, s9, %d" % LDSX)
    a("v_lshlrev_b32 v48, 5, v5"); a("v_add_u32 v48, s9, v48")
    a("ds_write_b128 v48, v[32:35]"); a("ds_write_b128 v48, v[36:39] offset:16")
    a("s_waitcnt lgkmcnt(0)"); a("s_barrier")
    a("s_cmp_lg_u32 s%d, 0" % sWAVE); a("s_cbranch_scc1 %s" % L("gdone"))
    a("v_lshlrev_b32 v48, 3, v3"); a("v_add_u32 v49, %d, v48" % LDSX)
    for w in range(4): a("ds_read_b64 v[%d:%d], v49 offset:%d" % (32 + 2 * w, 33 + 2 * w, 128 * w))
    a("s_lshl_b32 s9, s%d, 7" % sGI); a("s_add_u32 s9, s9, %d" % WS_MOD)
    a("v_add_u32 v%d, s9, v48" % vMA)
    a("v_mov_b32 v%d, s%d" % (vMOD + 1, sTAG))
    a("s_waitcnt lgkmcnt(0)")
    for e in range(2):
        a("v_add_f32 v%d, v%d, v%d" % (32 + e, 32 + e, 34 + e)); a("v_add_f32 v%d, v%d, v%d" % (36 + e, 36 + e, 38 + e)); a("v_add_f32 v%d, v%d, v%d" % (32 + e, 32 + e, 36 + e))
    a("v_cvt_pk_bf16_f32 v%d, v32, v33" % vMOD)
    a("s_cmp_ge_u32 s%d, 28" % sGI); a("s_cbranch_scc1 %s" % L("glate"))
    a("buffer_store_dwordx2 v[%d:%d], v%d, s[%d:%d], 0 offen sc1" % (vMOD, vMOD + 1, vMA, sW, sW + 3))
    a("s_branch %s" % L("gdone"))
    a.label(L("glate"))
    a("s_lshl_b32 s9, s%d, 6" % sGI); a("s_add_u32 s9, s9, %d" % (WS_MOD2 - 28 * 64)); a("v_lshlrev_b32 v48, 2, v3")
    a("buffer_store_dword v%d, v48, s[%d:%d], s9 offen sc1" % (vMOD, sW, sW + 3))
    a("s_branch %s" % L("gdone"))
    a.label(L("nogc"))
    dma_wq(1); dma_kv(sR, 2)
    a.label(L("gdone"))
    c.stamp()
    dma_wq(2); dma_kv(sR, 3)
    a("s_cmp_ge_u32 s%d, 2" % sCR); a("s_cbranch_scc1 %s" % L("noq3"))
    dma_wq(3)
    a.label(L("noq3"))
    c.stamp()
    srd(a, sV, pV, 8388608); srd(a, sLo, pWO, 448 * 4096 * 2)
    a("s_waitcnt vmcnt(28)")
    a("v_cmp_gt_u32 s[62:63], 56, v%d" % vLANE)
    a("s_nop 1")
    for j in range(8): a("v_cndmask_b32 v%d, 0, v%d, s[62:63]" % (vX + j, vX + j))
    unpack8(a, 32, vX); unpack8(a, 40, vX + 4)
    for rr in range(2):
        b = 32 + 8 * rr; s = 48 + rr
        a("v_add_f32 v%d, v%d, v%d" % (s, b, b + 1))
        for j in range(2, 8): a("v_add_f32 v%d, v%d, v%d" % (s, s, b + j))
    wave_sum(a, [48, 49], [50, 51])
    for rr in range(2):
        b = 32 + 8 * rr; s = 48 + rr
        a("v_mul_f32 v%d, %s, v%d" % (s, f2h(1.0 / 448), s))
        for j in range(8): a("v_sub_f32 v%d, v%d, v%d" % (b + j, b + j, s))
        a("v_mul_f32 v%d, v%d, v%d" % (s, b, b))
        for j in range(1, 8): a("v_fmac_f32 v%d, v%d, v%d" % (s, b + j, b + j))
        a("v_cndmask_b32 v%d, 0, v%d, s[62:63]" % (s, s))
    wave_sum(a, [48, 49], [50, 51])
    for rr in range(2):
        a("v_mov_b32 v%d, %s" % (50 + rr, f2h(1e-5))); a("v_fmac_f32 v%d, %s, v%d" % (50 + rr, f2h(1.0 / 448), 48 + rr))
    for rr in range(2): a("v_rsq_f32 v%d, v%d" % (48 + rr, 50 + rr))
    a("s_nop 0")
    for rr in range(2):
        for j in range(8): a("v_mul_f32 v%d, v%d, v%d" % (32 + 8 * rr + j, 32 + 8 * rr + j, 48 + rr))
    vRA = 52
    a("v_lshrrev_b32 v50, 2, v3"); a("v_lshlrev_b32 v50, 3, v50"); a("v_and_b32 v51, 3, v3"); a("v_add_u32 v50, v50, v51")
    for kk in range(4):
        a("v_add_u32 v51, %d, v4" % (4 * kk)); a("v_xor_b32 v51, v51, v3"); a("v_lshlrev_b32 v51, 4, v51")
        a("v_lshl_add_u32 v51, v50, 9, v51")
        a("v_add_u32 v%d, s%d, v51" % (vRA + kk, sLW16)); a("v_add_u32 v%d, 0x10000, v51" % (vRA + 4 + kk))
    a("v_min_u32 v50, 55, v%d" % vLANE); a("v_lshlrev_b32 v60, 5, v50"); a("v_and_b32 v61, 0x3c, v50")
    a("s_mov_b32 s13, %d" % WS_MOD)
    vG = 108
    a("v_mov_b32 v127, 0")
    modloads = ["buffer_load_dwordx4 v[%d:%d], v60, s[%d:%d], s13 offen offset:%d sc1" % (vG + 4 * u, vG + 4 * u + 3, sW, sW + 3, (u >> 1) * 1792 + (u & 1) * 16) for u in range(4)]
    modloads += ["buffer_load_dword v124, v61, s[%d:%d], 0 offen sc1" % (sD, sD + 3), "buffer_load_dword v125, v61, s[%d:%d], 0 offen offset:56 sc1" % (sD, sD + 3),
                 "buffer_load_dword v126, v127, s[%d:%d], 0 offen sc1" % (sD, sD + 3)]
    vA, vD, vO = 224, 64, 100
    a("s_lshl_b32 s10, s%d, 2" % sKQ); a("s_add_u32 s10, s10, s%d" % sWAVE)
    a("s_lshr_b32 s11, s10, 1"); a("s_mul_i32 s11, s11, 56"); a("s_and_b32 s12, s10, 1"); a("s_lshl_b32 s12, s12, 1"); a("s_add_u32 s11, s11, s12")
    a("s_lshr_b32 s12, s%d, 3" % sC0); a("s_add_u32 s11, s11, s12"); a("s_lshl_b32 s11, s11, 10")
    a("s_mul_i32 s14, s%d, %d" % (sHEAD, 896 * 1024)); a("s_add_u32 s14, s14, %d" % WS_ST)
    a("s_add_u32 s11, s11, s14")
    a("s_mov_b32 s12, %s" % f2h(math.log2(math.e) / 16))
    a("s_cmp_ge_u32 s%d, 2" % sCR); a("s_cselect_b32 s15, -1, 0"); a("s_and_b32 s15, s15, 0x%x" % OOR)
    a("v_or_b32 v%d, s15, v%d" % (vNA3, vL16)); a("v_mov_b32 v%d, v%d" % (vNA, vL16))
    a("s_lshl_b32 s%d, s%d, 8" % (sOB, sHEAD)); a("s_lshl_b32 s9, s%d, 6" % sWAVE); a("s_add_u32 s%d, s%d, s9" % (sOB, sOB)); a("s_mul_i32 s%d, s%d, 896" % (sOB, sOB))
    a("s_lshl_b32 s9, s%d, 1" % sC0); a("s_add_u32 s%d, s%d, s9" % (sOB, sOB))
    vR = 160
    def read_r():
        for kd in range(8):
            for kt in range(2):
                r = vR + (kt * 8 + kd) * 4
                a("ds_read_b128 v[%d:%d], v%d offset:%d" % (r, r + 3, vRA + (kd & 3), kt * 4 * 512 + (kd >> 2) * 256))
                if kd * 2 + kt == 14: a("s_waitcnt lgkmcnt(8)")
    a("s_waitcnt vmcnt(0)")
    c.stamp()
    for t in modloads: a(t)
    read_r()
    a("s_barrier")
    NBF = 5; DD = 4
    frs = [(P, kd, ct) for P in range(4) for kd in range(8) for ct in range(2)]
    def rdm(n):
        P, kd, ct = frs[n]; b = vA + 4 * (n % NBF)
        a("ds_read_b128 v[%d:%d], v%d offset:%d" % (b, b + 3, vRA + 4 + (kd & 3), (32 * P + 4 * ct) * 512 + (kd >> 2) * 256))
    def epim(P):
        d = vD + 16 * (P & 1); out = []
        out.append("s_add_u32 s9, s11, %d" % (P * 4096))
        for u in range(2):
            src = [d + u * 4 + r for r in range(4)] + [d + (2 + u) * 4 + r for r in range(4)]
            for r in src: out.append("v_mul_f32 v%d, s12, v%d" % (r, r))
            for j in range(4): out.append("v_cvt_pk_bf16_f32 v%d, v%d, v%d" % (vO + 4 * u + j, src[2 * j], src[2 * j + 1]))
            out.append("buffer_store_dwordx4 v[%d:%d], v%d, s[%d:%d], s9 offen offset:%d %s" % (vO + 4 * u, vO + 4 * u + 3, vNA3 if P == 3 else vL16, sW, sW + 3, u * 1024, PUB))
        return out
    for n in range(DD): rdm(n)
    pend = []
    for n, (P, kd, ct) in enumerate(frs):
        a("s_waitcnt lgkmcnt(%d)" % (min(n + DD, len(frs)) - n - 1))
        b = vA + 4 * (n % NBF); d = vD + 16 * (P & 1)
        if P > 0 and kd == 1 and ct == 0: pend = epim(P - 1)
        for kt in range(2):
            r = vR + (kt * 8 + kd) * 4; acc = d + (ct * 2 + kt) * 4
            a("v_mfma_f32_16x16x32_bf16 v[%d:%d], v[%d:%d], v[%d:%d], %s" % (acc, acc + 3, b, b + 3, r, r + 3, "0" if kd == 0 else "v[%d:%d]" % (acc, acc + 3)))
            if kt == 0 and n + DD < len(frs): rdm(n + DD)
            for _ in range(1 if kt == 0 else 2):
                if pend: a(pend.pop(0))
    assert not pend
    a("s_nop 7")
    for t in epim(3): a(t)
    c.stamp()
    chk = [(vG + 1 + 2 * u, "v124") for u in range(4)] + [(vG + 9 + 2 * u, "v125") for u in range(4)]
    a("s_mov_b32 s61, %d" % SPIN)
    a("s_waitcnt vmcnt(8)"); a("s_branch %s" % L("mc"))
    a.label(L("ml"))
    for t in modloads: a(t)
    a("s_waitcnt vmcnt(0)")
    a.label(L("mc"))
    a("v_xor_b32 v96, v%d, v124" % chk[0][0])
    for r, tg in chk[1:]:
        a("v_xor_b32 v97, v%d, %s" % (r, tg)); a("v_or_b32 v96, v96, v97")
    a("v_and_b32 v97, v124, v125"); a("v_and_b32 v97, v97, v126"); a("v_not_b32 v97, v97"); a("v_and_b32 v97, 1, v97"); a("v_or_b32 v96, v96, v97")
    a("v_cmp_ne_u32 vcc, 0, v96")
    a("s_nop 0")
    a("s_cbranch_vccz %s" % L("md"))
    a("s_sub_u32 s61, s61, 1"); a("s_cmp_lg_u32 s61, 0"); a("s_cbranch_scc1 %s" % L("ml"))
    a.label(L("md"))
    c.stamp()
    a("v_readfirstlane_b32 s%d, v126" % sTAG)
    a("v_mov_b32 v%d, v126" % vTAG)
    unpack8(a, 64, vG, 2); unpack8(a, 72, vG + 8, 2)
    for j in range(8): a("v_add_f32 v%d, 1.0, v%d" % (72 + j, 72 + j))
    LDSH = 152 * 1024
    a("s_lshl_b32 s9, s%d, 5" % sWAVE); a("s_add_u32 s9, s9, %d" % LDSH)
    a("v_lshlrev_b32 v96, 7, v%d" % vLANE); a("v_add_u32 v96, s9, v96"); a("v_mov_b32 v97, 0x%x" % OOR)
    for rr in range(2):
        b = 32 + 8 * rr
        for j in range(8): a("v_fma_f32 v%d, v%d, v%d, v%d" % (b + j, b + j, 72 + j, 64 + j))
        for j in range(4): a("v_cvt_pk_bf16_f32 v%d, v%d, v%d" % (80 + 4 * rr + j, b + 2 * j, b + 2 * j + 1))
        a("ds_write_b128 v96, v[%d:%d] offset:%d" % (80 + 4 * rr, 83 + 4 * rr, 16 * rr))
    a("v_cmp_eq_u32 vcc, 0, v%d" % vLANE); a("s_nop 1"); a("v_cndmask_b32 v%d, v97, v127, vcc" % vL0)
    a("s_lshl_b32 s15, s%d, 2" % sT); a("s_add_u32 s60, s15, s%d" % sWAVE)
    flag_addr(a, 12, FL_A, sHEAD, 60, 61)
    a("s_lshr_b32 s15, s%d, 5" % sROW)
    a("s_and_b32 s60, s%d, 3" % sJ); a("s_lshl_b32 s60, s60, 2"); a("s_add_u32 s60, s60, s%d" % sWAVE)
    flag_addr(a, 13, FL_B, 15, 60, 61)
    a("s_lshl_b32 s9, s%d, 10" % sWAVE); a("s_add_u32 s9, s9, %d" % LDSH); a("v_add_u32 v96, s9, v%d" % vL16)
    a("v_lshrrev_b32 v98, 3, v%d" % vLANE); a("v_and_b32 v99, 7, v%d" % vLANE); a("v_lshlrev_b32 v98, 8, v98"); a("v_lshl_add_u32 v98, v99, 4, v98")
    a("s_cmp_eq_u32 s%d, 3" % sWAVE); a("s_cselect_b32 s15, -1, 0"); a("s_and_b32 s15, s15, 0x%x" % OOR); a("v_or_b32 v99, s15, v98")
    a("s_lshr_b32 s9, s%d, 4" % sROW); a("s_mul_i32 s9, s9, 14336"); a("s_and_b32 s15, s%d, 8" % sROW); a("s_lshl_b32 s15, s15, 4")
    a("s_add_u32 s9, s9, s15"); a("s_lshl_b32 s15, s%d, 11" % sWAVE); a("s_add_u32 s9, s9, s15"); a("s_add_u32 s9, s9, %d" % WS_HF); a("s_add_u32 s15, s9, 8192")
    a("s_waitcnt lgkmcnt(0)")
    a("s_barrier")
    a("ds_read_b128 v[80:83], v96"); a("ds_read_b128 v[84:87], v96 offset:4096")
    a("s_waitcnt lgkmcnt(1)")
    a("buffer_store_dwordx4 v[80:83], v98, s[%d:%d], s9 offen sc1" % (sW, sW + 3))
    a("s_waitcnt lgkmcnt(0)")
    a("buffer_store_dwordx4 v[84:87], v99, s[%d:%d], s15 offen sc1" % (sW, sW + 3))
    def dma_wo(g):
        if ROT: a("s_xor_b32 s9, s%d, %d" % (sKQ, g))
        else: a("s_mov_b32 s9, %d" % g)
        a("s_mul_i32 s11, s9, %d" % (16 * 896)); a("s_add_u32 s11, s11, s%d" % sOB)
        a("s_lshl_b32 s9, s9, 12"); a("s_add_u32 s9, s9, s%d" % sLW16); a("s_add_u32 m0, s9, 65536")
        a("s_nop 0")
        for k in range(4):
            if k: a("s_add_u32 s11, s11, %d" % (3584 - 1024))
            a("buffer_load_dwordx4 v%d, s[%d:%d], s11 offen offset:%d %s lds" % (vOA, sLo, sLo + 3, k * 1024, NT))
    NPF = opt.get("npf", 3)
    def flags(younger):
        a("s_waitcnt vmcnt(%d)" % younger)
        a("buffer_store_dword v%d, v%d, s[%d:%d], s12 offen sc1" % (vTAG, vL0, sW, sW + 3))
        a("buffer_store_dword v%d, v%d, s[%d:%d], s13 offen sc1" % (vTAG, vL0, sW, sW + 3))
        c.stamp()
    for g in range(4):
        if g == NPF: flags(8 * g)
        dma_kv(sV, g); dma_wo(g)
    if NPF == 4: flags(32)
    sWS = 32
    a("s_lshl_b32 s12, s2, 2"); a("s_add_u32 s12, s12, s%d" % sWAVE)
    a("s_cmp_ge_u32 s12, 392")
    a("s_cselect_b32 s36, s%d, s%d" % (pW2, pW1)); a("s_cselect_b32 s37, s%d, s%d" % (pW2 + 1, pW1 + 1))
    a("s_mov_b32 s38, 3584"); a("s_cmov_b32 s38, 896")
    a("s_cselect_b32 s39, 392, 0")
    a("s_mov_b32 s40, %d" % WS_W1); a("s_cmov_b32 s40, %d" % WS_W2)
    a("s_cselect_b32 s41, 56, 14")
    a("s_mov_b32 s42, %d" % ((2 ** 32 + 27) // 28)); a("s_cmov_b32 s42, %d" % ((2 ** 32 + 6) // 7))
    a("s_cselect_b32 s43, 7, 28")
    srd(a, sWS, 36, 448 * 1792 * 2)
    a("s_cmp_ge_u32 s12, 784"); a("s_cselect_b32 s15, -1, 0"); a("s_and_b32 s15, s15, 0x%x" % OOR)
    a("s_sub_u32 s12, s12, s39"); a("s_mul_hi_u32 s13, s12, s42"); a("s_mul_i32 s39, s13, s43"); a("s_sub_u32 s39, s12, s39")
    a("v_lshrrev_b32 v0, 3, v%d" % vLANE); a("v_and_b32 v1, 7, v%d" % vLANE)
    a("v_mul_lo_u32 v5, v0, s38"); a("v_lshl_add_u32 v5, v1, 4, v5"); a("v_or_b32 v5, s15, v5")
    a("s_lshl_b32 s9, s13, 5"); a("s_mul_i32 s9, s9, s38"); a("s_lshl_b32 s12, s39, 7"); a("s_add_u32 s9, s9, s12")
    a("s_lshl_b32 s12, s38, 3")
    for j in range(4):
        a("buffer_load_dwordx4 v[%d:%d], v5, s[%d:%d], s9 offen %s" % (32 + 4 * j, 35 + 4 * j, sWS, sWS + 3, NT))
        if j < 3: a("s_add_u32 s9, s9, s12")
    a("v_mov_b32 v%d, v98" % vC5)
    a("s_cmp_eq_u32 s%d, 2" % sWAVE); a("s_cselect_b32 s60, -1, 0"); a("s_and_b32 s60, s60, 0x%x" % OOR); a("v_or_b32 v%d, s60, v98" % vC6)
    a("v_mul_u32_u24 v8, 896, v1"); a("v_lshl_add_u32 v8, v0, 4, v8"); a("v_or_b32 v9, s60, v8")
    a("s_and_b32 s9, s%d, -8" % sROW); a("s_mul_i32 s9, s9, 896"); a("s_lshl_b32 s12, s%d, 1" % sWAVE); a("s_min_u32 s12, s12, 5"); a("s_lshl_b32 s12, s12, 7"); a("s_add_u32 s9, s9, s12")
    a("buffer_load_dwordx4 a[%d:%d], v8, s[%d:%d], s9 offen" % (aXC, aXC + 3, sXs, sXs + 3))
    a("buffer_load_dwordx4 a[%d:%d], v9, s[%d:%d], s9 offen offset:128" % (aXC + 4, aXC + 7, sXs, sXs + 3))
    RS = 144
    a("s_mul_i32 s12, s%d, %d" % (sWAVE, 32 * RS)); a("s_add_u32 s12, s12, %d" % (LDSX + 1024))
    a("v_mul_u32_u24 v6, %d, v0" % RS); a("v_lshl_add_u32 v6, v1, 4, v6"); a("v_add_u32 v6, s12, v6")
    a("v_lshrrev_b32 v50, 2, v3")
    a("v_lshl_add_u32 v51, v4, 3, v50"); a("v_and_b32 v48, 3, v3")
    a("v_mul_u32_u24 v7, %d, v51" % RS); a("v_lshl_add_u32 v7, v48, 4, v7"); a("v_add_u32 v7, s12, v7")
    a("s_mul_i32 s56, s39, s41"); a("s_add_u32 s56, s56, s13"); a("s_lshl_b32 s56, s56, 12"); a("s_add_u32 s56, s56, s40")
    a("v_or_b32 v%d, s15, v%d" % (vWS, vL16))
    a("v_lshlrev_b32 v51, 8, v51"); a("v_lshl_add_u32 v51, v48, 4, v51"); a("v_add_u32 v51, 0x10000, v51")
    for P in range(4):
        a("v_xor_b32 v48, %d, v50" % P); a("v_lshl_add_u32 v%d, v48, 6, v51" % (vRA + 4 + P))
    a("s_waitcnt vmcnt(6)")
    c.stamp()
    read_r()
    a("s_barrier")
    a("s_mov_b32 s12, %s" % f2h(2.0 ** NSCALE))
    fr = [(P, kd, ct) for P in range(4) for kd in range(8) for ct in range(2)]
    def rdn(n):
        P, kd, ct = fr[n]; b = vA + 4 * (n % NBF)
        for hh in range(2):
            a("ds_read_b64_tr_b16 v[%d:%d], v%d offset:%d" % (b + 2 * hh, b + 2 * hh + 1, vRA + 4 + P, (kd * 32 + 4 * hh) * 256 + 8 * ct))
    def epin(P):
        d = vD + 16 * (P & 1); out = []
        for ct in range(2):
            src = [d + ct * 4 + r for r in range(4)] + [d + (2 + ct) * 4 + r for r in range(4)]
            for r in src: out.append("v_mul_f32 v%d, s12, v%d" % (r, r))
            for j in range(4): out.append("v_cvt_pk_bf16_f32 v%d, v%d, v%d" % (vNH + (P * 2 + ct) * 4 + j, src[2 * j], src[2 * j + 1]))
        return out
    a("s_waitcnt lgkmcnt(4)")
    for n in range(DD): rdn(n)
    for n, (P, kd, ct) in enumerate(fr):
        a("s_waitcnt lgkmcnt(%d)" % (2 * (min(n + DD, len(fr)) - n - 1)))
        b = vA + 4 * (n % NBF); d = vD + 16 * (P & 1)
        if P > 0 and kd == 1 and ct == 0: pend = epin(P - 1)
        for kt in range(2):
            r = vR + (kt * 8 + kd) * 4; acc = d + (kt * 2 + ct) * 4
            a("v_mfma_f32_16x16x32_bf16 v[%d:%d], v[%d:%d], v[%d:%d], %s" % (acc, acc + 3, r, r + 3, b, b + 3, "0" if kd == 0 else "v[%d:%d]" % (acc, acc + 3)))
            if kt == 0 and n + DD < len(fr): rdn(n + DD)
            if kt == 1:
                for _ in range(2):
                    if pend: a(pend.pop(0))
    assert not pend
    a("s_waitcnt vmcnt(0)")
    for j in range(4): a("ds_write_b128 v6, v[%d:%d] offset:%d" % (32 + 4 * j, 35 + 4 * j, j * 8 * RS))
    for t in range(4):
        for hh in range(2):
            a("ds_read_b64_tr_b16 a[%d:%d], v7 offset:%d" % (aWH + 4 * t + 2 * hh, aWH + 4 * t + 2 * hh + 1, 4 * hh * RS + (t >> 1) * 64 + (t & 1) * 8))
    for t in epin(3): a(t)
    a("s_lshl_b32 s10, s10, 12"); a("s_add_u32 s10, s10, s14"); a("s_add_u32 s10, s10, %d" % (448 * 1024))
    a("s_lshr_b32 s11, s%d, 5" % sC0)
    for P in range(4):
        a("s_add_u32 s9, s11, %d" % P); a("s_lshr_b32 s12, s9, 1"); a("s_lshl_b32 s12, s12, 16"); a("s_and_b32 s9, s9, 1"); a("s_lshl_b32 s9, s9, 11")
        a("s_add_u32 s9, s9, s12"); a("s_add_u32 s%d, s9, s10" % (44 + P))
    a("s_waitcnt lgkmcnt(0)")
    c.stamp()
```

```python
from mega_common import *
from sched import *
from mega_a import vNH, aWH, vL0, vNA, vNA3, vWS
B0 = 102.0
aMOD = 0
def a_w2(k): return 4 * k if k < 28 else 144 + 4 * (k - 28)
def lds_w1(f): return (((32 + f // 28) % 5) * 28 + f % 28) * 1024

def phase_b(c):
    a = c.a; L = c.L; opt = c.opt
    D = opt.get("D", 7); NB = opt.get("NB", 9); WE = opt.get("WE", 3)
    SL = 28; NS = 5; NF = 896; NC = NF // SL
    LAG = opt.get("lag", 4)
    PUB = opt.get("pub", "sc1"); LDF = opt.get("ldf", "sc1"); YF = opt.get("yf", "sc1")
    vX = [0, 32, 160]
    vP = 64
    vNEG, vL, vT, vY = 192, 200, 204, 208
    vRD = [vL16, 225, 226]
    vG, vO, vRL = 227, 228, 230
    vFL, vFA, vG1, vG2, vF0, vMA, vMB = 232, 236, 237, 240, 241, 238, 239
    aH, aA = 0, 112
    sLW, sOFF, sST, sHB = 48, 49, 24, 50
    a("v_add_u32 v%d, 0x10000, v%d" % (vRD[1], vL16)); a("v_add_u32 v%d, 0x20000, v%d" % (vRD[2], vL16))
    a("s_lshl_b32 s9, s%d, 2" % sT); a("s_add_u32 s9, s9, s%d" % sWAVE)
    a("s_mul_i32 s%d, s%d, %d" % (sLW, sWAVE, 7 * 1024))
    a("s_add_u32 s10, s14, s%d" % sLW)
    a("v_add_u32 v%d, s10, v%d" % (vG, vL16))
    a("s_mul_i32 s%d, s9, %d" % (sHB, 28 * 1024))
    a("s_mul_i32 s11, s%d, %d" % (sHEAD, 64 * 28 * 1024)); a("s_add_u32 s11, s11, s%d" % sHB); a("s_add_u32 s11, s11, %d" % WS_YP)
    a("v_add_u32 v%d, s11, v%d" % (vO, vL16))
    a("v_add_u32 v229, s%d, v%d" % (sHB, vL16))
    assert WS_HF == 0
    for j in range(7): a("s_movk_i32 s%d, 0x%x" % (sST + j, j * 4096))
    a("s_cmp_ge_u32 s%d, 28" % sJ); a("s_cselect_b32 s15, -1, 0"); a("s_and_b32 s15, s15, 0x%x" % OOR)
    a("s_lshr_b32 s12, s%d, 1" % sJ); a("s_mul_i32 s12, s12, %d" % (112 * 1024)); a("s_add_u32 s12, s12, s%d" % sLW); a("s_add_u32 s12, s12, %d" % WS_W1)
    a("v_add_u32 v%d, s12, v%d" % (vG1, vL16)); a("v_or_b32 v%d, s15, v%d" % (vG1, vG1))
    a("s_lshr_b32 s12, s%d, 2" % sJ); a("s_mul_i32 s12, s12, %d" % (224 * 1024)); a("s_lshl_b32 s13, s%d, 3" % sLW); a("s_add_u32 s12, s12, s13"); a("s_add_u32 s12, s12, %d" % WS_W2)
    a("v_add_u32 v%d, s12, v%d" % (vG2, vL16)); a("v_or_b32 v%d, s15, v%d" % (vG2, vG2))
    a("s_mov_b32 s52, %d" % FL_W)
    flag_addr(a, 54, FL_Y, 9, sHEAD, 12)
    a("s_lshl_b32 s12, s%d, 1" % sWAVE); a("s_min_u32 s12, s12, 5"); a("s_lshl_b32 s12, s12, 7"); a("s_add_u32 s12, s12, %d" % WS_MOD2)
    a("v_lshrrev_b32 v0, 3, v%d" % vLANE); a("v_lshlrev_b32 v0, 4, v0"); a("v_add_u32 v%d, s12, v0" % vMA)
    a("s_lshr_b32 s12, s%d, 2" % sJ); a("s_lshl_b32 s12, s12, 7"); a("s_add_u32 s12, s12, %d" % (WS_MOD2 + 3 * 896))
    a("v_and_b32 v0, 48, v%d" % vLANE); a("v_add_u32 v%d, s12, v0" % vMB)
    a("s_cmp_lg_u32 s%d, 0" % sWAVE); a("s_cselect_b32 s15, -1, 0"); a("s_and_b32 s15, s15, 0x%x" % OOR); a("v_or_b32 v%d, s15, v%d" % (vF0, vL0))
    flag_addr(a, 57, FL_N, sHEAD, sT, 12)
    a("s_lshl_b32 s58, s2, 2"); a("s_add_u32 s58, s58, %d" % FL_W)
    flag_addr(a, 59, FL_N, sHEAD, None, 12)
    a("v_and_b32 v%d, 15, v%d" % (vFA, vLANE)); a("v_lshlrev_b32 v%d, 2, v%d" % (vFA, vFA))
    vCK = 244
    a("s_mov_b32 s62, 0"); a("s_mov_b32 s55, %s" % f2h(opt.get("lmax", 2.0 ** 30)))
    a("s_lshl_b32 s12, s%d, 2" % sWAVE); a("s_add_u32 s12, s12, %d" % (140 * 1024)); a("v_mov_b32 v%d, s12" % vCK); a("v_mov_b32 v%d, %d" % (vCK + 1, 140 * 1024))
    a("v_mov_b32 v242, 0xff800000"); a("v_mov_b32 v243, 0xff800000")
    flag_addr(a, 12, FL_A, sHEAD, None, 15)
    flag_addr(a, 13, FL_B, 9, None, 15)
    a("s_lshl_b32 s15, s%d, 6" % sWAVE); a("s_add_u32 s12, s12, s15")
    c.poll4([(0, 12, 4), (4, 13, 4)])
    a("s_barrier")
    c.stamp()
    a.label(L("restart"))
    vm = []; lg = []
    def dma_ops(ch):
        ops = []
        for j in range(7):
            if j in (0, 4):
                ops.append(Op("s_add_u32 m0, s%d, 0x%x" % (sLW, (ch % NS) * SL * 1024 + j * 1024)))
                ops.append(Op("s_mov_b32 s%d, 0x%x" % (sOFF, (ch % NC) * SL * 1024 + j * 1024)))
            ops.append(Op("buffer_load_dwordx4 v%d, s[%d:%d], s%d offen offset:%d %s lds" % (vG if ch < NC else vG1, sW, sW + 3, sOFF, (j % 4) * 1024, LDF if ch < NC else "sc1"), ("dma", ch)))
        return ops
    def h_ops(ks):
        ops = []
        for cb in range(2):
            off = cb * 14 * 1024 + ks * 1024; r = aH + (ks * 2 + cb) * 4
            ops.append(Op("buffer_load_dwordx4 a[%d:%d], v229, s[%d:%d], s%d offen offset:%d sc1" % (r, r + 3, sW, sW + 3, sST + (off >> 12), off & 4095), ("h", ks)))
        return ops
    def wait_text(q, pred, fmt, mx):
        last = -1
        for i, t in enumerate(q):
            if pred(t): last = i
        n = len(q) - 1 - last
        if n > mx:
            n = mx; last = len(q) - 1 - n
        del q[:last + 1]
        return fmt % n
    issued = {}
    def emit(op):
        tag = op.tag
        if tag is not None:
            k = tag[0]
            if k == "vmw": assert issued.get(tag[1], 0) == (7 if tag[1][0] == "dma" else 2), tag
            if k == "need": assert issued.get(tag[1], 0) == 1, tag
            if k == "lgw": assert all(issued.get(t, 0) == 1 for t in tag[1]), tag
            if op.kind == 'm': issued[tag] = issued.get(tag, 0) + 1
            if k == "vmw" and opt.get("novmw") and tag[1][0] == "dma" and tag[1][1] > 5:
                wait_text(vm, lambda t: t == tag[1], "%d", 63); return
            if k == "bar" and opt.get("nobar") and tag[1] > 5: return
            if k == "vmw": a(wait_text(vm, lambda t: t == tag[1], "s_waitcnt vmcnt(%d)", 63)); return
            if k == "vmw1":
                assert issued.get(tag[1], 0) == 1
                if tag[1] in vm: a(wait_text(vm, lambda t: t == tag[1], "s_waitcnt vmcnt(%d)", 63))
                return
            if k == "lgw": a(wait_text(lg, lambda t: t in tag[1], "s_waitcnt lgkmcnt(%d)", 15)); return
            if k == "bar": a("s_barrier"); return
            if k == "need":
                assert tag[1] not in vm and tag[1] not in lg, tag
                return
            if k == "code":
                tag[1](); return
        if tag is not None and tag[0] in opt.get("skip", []): return
        if op.kind in 've' and opt.get("novalu"): return
        if op.kind == 'm':
            if op.name.startswith("ds_"): lg.append(tag)
            else:
                vm.append(tag); assert len(vm) <= 63
        a(op.text)
    seq = []
    def fr(blk, ks, t, buf): return (blk * 56 + ks * 4 + t, vX[buf], t, aH + ks * 8, "a", ks == 0, blk >= 2)
    for s in range(14 + LAG):
        if s < 14: seq += [fr(0, s, t, 0) for t in range(4)]
        if s >= LAG: seq += [fr(1, s - LAG, t, 1) for t in range(4)]
    bufof = {0: 0, 1: 1, 2: 2, 3: 0, 4: 1, 5: 2, 6: 0, 7: 1}
    for blk in range(2, 8):
        for ks in range(14): seq += [fr(blk, ks, t, bufof[blk]) for t in range(4)]
    for ob in range(7):
        for s in range(16):
            seq += [(448 + ob * 64 + s * 4 + t, vX[ob & 1], t, vP + s * 8, "v", s == 0, False) for t in range(4)]
    assert sorted(x[0] for x in seq) == list(range(NF))
    mf = []
    for n, (f, accb, t, breg, bfile, first, cneg) in enumerate(seq):
        b = aA + 4 * (n % NB)
        for u in range(2):
            cb = u ^ (t & 1); acc = accb + (t * 2 + cb) * 4; r = breg + cb * 4
            cc = ("v[%d:%d]" % (vNEG + 4 * cb, vNEG + 4 * cb + 3) if cneg else "0") if first else "v[%d:%d]" % (acc, acc + 3)
            mf.append("v_mfma_f32_16x16x32_bf16 v[%d:%d], a[%d:%d], %s[%d:%d], %s" % (acc, acc + 3, b, b + 3, bfile, r, r + 3, cc))
    NM = len(mf)
    def read_op(n):
        off = (seq[n][0] % (SL * NS)) * 1024; b = aA + 4 * (n % NB)
        return Op("ds_read_b128 a[%d:%d], v%d offset:%d" % (b, b + 3, vRD[off >> 16], off & 0xffff), ("rd", n))
    firstuse = {}; lastuse = {}
    for n, x in enumerate(seq):
        ch = x[0] // SL
        firstuse.setdefault(ch, n); lastuse[ch] = n
    hfirst = {}
    for n, x in enumerate(seq[:112]):
        hfirst.setdefault((x[3] - aH) // 8, n)
    S = Slots(NM); S.tdist = opt.get('tdist', 1); S.vdist = opt.get('vdist', 0)
    for n in range(NF):
        if n + D < NF: S.set_first(2 * n, read_op(n + D))
        if (n + 1) % WE == 0 and n + 1 < NF:
            S.set_first(2 * n + 1, Op("s_waitcnt", ("lgw", [("rd", k) for k in range(n + 1, min(n + WE, NF - 1) + 1)]), 's'))
    bars = {}
    for ch in range(1, NC):
        g = 2 * (firstuse[ch] - D) - 1
        bars[ch] = g
        if opt.get("barfree"):
            while S.first[g] is not None: g -= 2
            bars[ch] = g
        S.extra[g] += [Op("", ("vmw", ("dma", ch))), Op("", ("bar", ch))]
        S.cap[g] = 0
    for ks in range(1, 14):
        S.extra[2 * hfirst[ks] - 1] += [Op("", ("vmw", ("h", ks)))]
    items = [(firstuse[ch] - D, 0, dma_ops(ch)) for ch in range(NS)] + [(hfirst[ks], 1, h_ops(ks)) for ks in range(14)]
    items.sort(key=lambda x: (x[0], x[1]))
    PRE = opt.get("pre", 22)
    rest = []
    for dl, _, ops in items:
        if dl <= PRE:
            for o in ops: emit(o)
        else: rest += ops
    a(wait_text(vm, lambda t: t in (("dma", 0), ("h", 0)), "s_waitcnt vmcnt(%d)", 63))
    a("s_barrier")
    c.stamp()
    for n in range(D): emit(read_op(n))
    a(wait_text(lg, lambda t: t in [("rd", k) for k in range(WE)], "s_waitcnt lgkmcnt(%d)", 15))
    RATE = opt.get("rate", 4); g = 1
    for o in rest:
        S.extra[g].insert(0, o) if False else S.extra[g].append(o)
        if o.kind == 'm':
            S.cap[g] -= 1; g += RATE
    g_init_end = g
    barl = sorted(bars.values())
    SP = opt.get("sp", 6)
    G = 112; p = 896
    reqs = []
    def after_bar(g): return min(b for b in barl if b > g)
    g_n_dma = None
    for ch in range(NS, NC + 3):
        need = 2 * lastuse[ch - NS] + 1
        g0 = min(b for b in barl if b >= need) + 1
        if ch == 16: g_n_dma = g0
        helpers = []; k = 0
        for o in dma_ops(ch):
            if o.kind != 'm': helpers.append(o); continue
            reqs.append([g0 + 3 + 8 * k, g0, (bars[ch] - 40) if ch < NC else NM - 1, o, helpers, ("dma", ch, k)]); helpers = []; k += 1
    nst = [Op("buffer_store_dwordx4 v[%d:%d], v%d, s[%d:%d], s%d offen offset:%d %s" % (vNH + 4 * k, vNH + 4 * k + 3, vNA3 if k >= 6 else vNA, sW, sW + 3, 44 + k // 2, (k & 1) * 1024, PUB), ("nst", k)) for k in range(8)]
    nst += [Op("buffer_store_dwordx4 a[%d:%d], v%d, s[%d:%d], s56 offen offset:%d sc1" % (aWH + 4 * t, aWH + 4 * t + 3, vWS, sW, sW + 3, t * 1024), ("nst", 8 + t)) for t in range(4)]
    gn0 = opt.get("nstart", 190); nstep = opt.get("nstep", 20); wstart = opt.get("wstart", 790)
    for k, o in enumerate(nst): reqs.append([gn0 + nstep * k if k < 8 else wstart + 30 * (k - 8), 0, 5 * G - 10 if k < 8 else NM, o, [], ("nst", k)])
    def small(g, op):
        while S.first[g] is not None or S.extra[g]: g += 1
        S.set_first(g, op); return g
    gp = g_n_dma - 1
    for _ in range(opt.get("fnlate", 1)): gp = after_bar(gp)
    for r in reqs:
        if r[5][:2] == ("dma", 16): r[1] = gp + 1
    fnload = "buffer_load_dword v%d, v%d, s[%d:%d], s59 offen sc1" % (vFL, vFA, sW, sW + 3)
    def chk_fn():
        a("v_cmp_ne_u32 vcc, s%d, v%d" % (sTAG, vFL)); a("s_nop 0"); a("s_cbranch_vccz %s" % L("fn_ok"))
        c.poll([fnload], [(vFL, "s%d" % sTAG)])
        a.label(L("fn_ok"))
    S.extra[gp] += [Op("", ("vmw1", ("pl", 0))), Op("", ("code", chk_fn))]
    gw = after_bar(opt.get("fwat", 1400))
    assert gw < min(r[1] for r in reqs if r[5][:2] == ("dma", NC))
    fwload = "buffer_load_dwordx4 v[%d:%d], v%d, s[%d:%d], s52 offen sc1" % (vFL, vFL + 3, vL16, sW, sW + 3)
    reqs.append([gw - 170, 0, gw - 100, Op(fwload, ("pl", 1)), [], ("pl", 1)])
    def chk_fw():
        a("v_cmp_ne_u32 vcc, 0, v%d" % vFL); a("s_nop 0"); a("s_cbranch_vccz %s" % L("fw_ok"))
        c.poll([fwload], [(vFL + k, "s%d" % sTAG) for k in range(4)])
        a.label(L("fw_ok"))
    gwp = max(b for b in barl if b < gw)
    S.extra[gwp].append(Op("", ("vmw1", ("pl", 1))))
    fw_valu = ([Op("v_xor_b32 v%d, s%d, v%d" % (vFL + k, sTAG, vFL + k)) for k in range(4)] + [Op("v_or3_b32 v%d, v%d, v%d, v%d" % (vFL, vFL, vFL + 1, vFL + 2)), Op("v_or_b32 v%d, v%d, v%d" % (vFL, vFL, vFL + 3))], gwp + 1, gw - 2)
    S.extra[gw].append(Op("", ("code", chk_fw)))
    def ystore(ob, k):
        half, cb = k >> 1, k & 1; y = vY + k * 4; off = cb * 14 * 1024 + (2 * ob + half) * 1024
        return Op("buffer_store_dwordx4 v[%d:%d], v%d, s[%d:%d], s%d offen offset:%d %s" % (y, y + 3, vO, sW, sW + 3, sST + (off >> 12), off & 4095, YF), ("st", off))
    for ob in range(6):
        e = p + 128 * (ob + 1)
        for k in range(4): reqs.append([e + 16 + opt.get("ystep", 24) * k, e + 14, e + 140, ystore(ob, k), [], ("st", ob, k)])
    reqs.sort(key=lambda r: r[0])
    where = {}; last = g_init_end - RATE; lastdma = last
    pend = list(reqs)
    for g in range(g_init_end | 1, NM, 2):
        if g < last + SP or S.extra[g] or S.first[g] is not None: continue
        dq = [x for x in pend if x[5][0] == "dma"]
        nd = min(dq, key=lambda x: x[5]) if dq else None
        late = nd is not None and any(x[0] <= g and x[1] <= g for x in dq)
        cand = [r for r in pend[:40] if r[1] <= g and ((r[5][0] != "dma" and r[0] <= g) or (r is nd and late))]
        if not cand: continue
        r = cand[0]
        dm = [x for x in cand if x[5][0] == "dma"]
        if dm and dm[0][2] - g <= opt.get("urgent", 90): r = dm[0]
        assert g <= r[2], (g, r[5], r[2], sorted((gg, k) for k, gg in where.items()), barl, g_init_end, [(x[5], x[0], x[1], x[2]) for x in reqs[:30]])
        pend.remove(r); where[r[5]] = g; last = g
        if r[4]:
            free = [q for q in range(lastdma + 1, g) if S.first[q] is None and not S.extra[q]]
            hs = list(r[4])
            while hs and free: S.set_first(free.pop(0), hs.pop(0))
            q = g - 2
            if hs:
                assert q > lastdma
                S.extra[q] += hs; S.cap[q] -= len(hs)
        if S.first[g] is None: S.set_first(g, r[3])
        else:
            S.extra[g].append(r[3]); S.cap[g] = 0
        if r[5][0] == "dma": lastdma = g
    assert not pend, [r[5] for r in pend]
    gb = after_bar(where[("nst", 7)] + opt.get("ndelay", 60))
    S.extra[gb].insert(1, Op("", ("vmw1", ("nst", 7))))
    small(gb + 1, Op("buffer_store_dword v%d, v%d, s[%d:%d], s57 offen sc1" % (vTAG, vF0, sW, sW + 3), ("fl", 0)))
    gb2 = after_bar(where[("nst", 11)] + 150)
    S.extra[gb2].insert(1, Op("", ("vmw1", ("nst", 11))))
    small(gb2 + 1, Op("buffer_store_dword v%d, v%d, s[%d:%d], s58 offen sc1" % (vTAG, vF0, sW, sW + 3), ("fl", 1)))
    small(gp - opt.get("fnlead", 50), Op(fnload, ("pl", 0)))
    g = gw + 1
    for k in range(8):
        if k < 6: t = "buffer_load_dwordx4 a[%d:%d], v%d, s[%d:%d], 0 offen offset:%d sc1" % (aMOD + 4 * k, aMOD + 4 * k + 3, vMA, sW, sW + 3, (k >> 1) * 896 + (k & 1) * 128)
        else: t = "buffer_load_dwordx4 a[%d:%d], v%d, s[%d:%d], 0 offen offset:%d sc1" % (aMOD + 4 * k, aMOD + 4 * k + 3, vMB, sW, sW + 3, (k & 1) * 64)
        g = small(g, Op(t, ("md", k))) + 12
    def free_gap(g):
        g |= 1
        while S.extra[g] or S.first[g] is not None: g += 2
        return g
    def chk1():
        a("v_cmp_nge_f32 vcc, s55, v%d" % vL); a("v_cmp_nge_f32 s[60:61], s55, v%d" % (vL + 1))
        a("s_or_b64 vcc, vcc, s[60:61]"); a("s_cselect_b32 s60, 1, 0"); a("v_mov_b32 v%d, s60" % vT)
    gc = free_gap(p + 134)
    S.extra[gc] += [Op("", ("code", chk1)), Op("ds_write_b32 v%d, v%d" % (vCK, vT), ("ck", 0))]; S.cap[gc] = 0
    gcb = after_bar(gc + 2 * (D + WE) + 2)
    S.extra[gcb].insert(0, Op("", ("need", ("ck", 0))))
    gc = free_gap(gcb + 1)
    S.set_first(gc, Op("ds_read_b128 v[%d:%d], v%d" % (vT, vT + 3, vCK + 1), ("ck", 1)))
    def chk2():
        a("v_or3_b32 v%d, v%d, v%d, v%d" % (vT, vT, vT + 1, vT + 2)); a("v_or_b32 v%d, v%d, v%d" % (vT, vT, vT + 3)); a("s_nop 0")
        a("v_readfirstlane_b32 s60, v%d" % vT); a("s_nop 0"); a("s_cmp_gt_u32 s60, s62"); a("s_cbranch_scc1 %s" % L("slow"))
    gc = free_gap(gc + 2 * (D + WE) + 2)
    S.extra[gc] += [Op("", ("need", ("ck", 1))), Op("", ("code", chk2))]; S.cap[gc] = 0
    assert gc < gw
    def slow_path():
        a.label(L("slow"))
        a("s_waitcnt vmcnt(0) lgkmcnt(0)"); a("s_barrier")
        a("s_mov_b32 s62, 1"); a("v_mov_b32 v%d, 0x%x" % (vNA, OOR)); a("v_mov_b32 v%d, 0x%x" % (vNA3, OOR))
        a("v_subrev_u32 v64, s%d, v%d" % (sLW, vG))
        a("s_mov_b32 s60, 0")
        a.label(L("slow_l"))
        for ks in range(14):
            a("s_add_u32 s61, s60, %d" % (ks * 4096))
            for t in range(4): a("buffer_load_dwordx4 v[%d:%d], v64, s[%d:%d], s61 offen offset:%d sc1" % (68 + 4 * t, 71 + 4 * t, sW, sW + 3, t * 1024))
            a("s_waitcnt vmcnt(0)")
            for t in range(4):
                for cb in range(2):
                    acc = (t * 2 + cb) * 4; r = aH + ks * 8 + cb * 4
                    a("v_mfma_f32_16x16x32_bf16 v[%d:%d], v[%d:%d], a[%d:%d], %s" % (acc, acc + 3, 68 + 4 * t, 71 + 4 * t, r, r + 3, "0" if ks == 0 else "v[%d:%d]" % (acc, acc + 3)))
        a("s_nop 7"); a("s_nop 7")
        for cb in range(2):
            v = [(t * 2 + cb) * 4 + r for t in range(4) for r in range(4)]
            for j in range(0, 16, 2): a("v_max3_f32 v%d, v%d, v%d, v%d" % (242 + cb, 242 + cb, v[j], v[j + 1]))
        a("s_add_u32 s60, s60, %d" % (56 * 1024)); a("s_cmp_lt_u32 s60, %d" % (448 * 1024)); a("s_cbranch_scc1 %s" % L("slow_l"))
        a("s_branch %s" % L("restart"))
    c.slow_path = slow_path
    gy = where[("st", 4, 3)] + opt.get("ydelay", 50)
    gy |= 1
    while S.extra[gy] or S.first[gy] is not None: gy += 2
    S.extra[gy] += [Op("", ("vmw1", ("st", 14 * 1024 + 9 * 1024))), Op("buffer_store_dword v%d, v%d, s[%d:%d], s54 offen sc1" % (vTAG, vL0, sW, sW + 3), ("fl", 2))]
    S.cap[gy] = 0
    if opt.get("v"): print(sorted((g, k) for k, g in where.items() if g < 900), barl, gb, gb2, gp)
    c.last_dma = dma_ops(NC + 3)
    def xlane(reg, tmp, op):
        return [Op("v_mov_b32 v%d, v%d" % (tmp, reg)), Op("v_permlane32_swap_b32 v%d, v%d" % (reg, tmp)), Op("%s v%d, v%d, v%d" % (op, reg, reg, tmp)),
                Op("v_mov_b32 v%d, v%d" % (tmp, reg)), Op("v_permlane16_swap_b32 v%d, v%d" % (reg, tmp)), Op("%s v%d, v%d, v%d" % (op, reg, reg, tmp))]
    def zipl(x, y): return [o for p in zip(x, y) for o in p]
    def vals(base, cb): return [base + (t * 2 + cb) * 4 + r for t in range(4) for r in range(4)]
    def max_ops():
        ch = []
        for cb in range(2):
            v = vals(vX[0], cb); m = vT + cb; ops = []
            ops.append(Op("v_max3_f32 v%d, v%d, v%d, v%d" % (m, v[0], v[1], 242 + cb)))
            for j in range(2, 16, 2): ops.append(Op("v_max3_f32 v%d, v%d, v%d, v%d" % (m, m, v[j], v[j + 1])))
            ch.append(ops)
        ops = zipl(ch[0], ch[1])
        ops += zipl(xlane(vT, vT + 2, "v_max_f32"), xlane(vT + 1, vT + 3, "v_max_f32"))
        for cb in range(2): ops.append(Op("v_sub_f32 v%d, %s, v%d" % (vNEG + 4 * cb, f2h(-B0), vT + cb)))
        ops += [Op("v_mov_b32 v%d, v%d" % (vNEG + 4 * cb + r, vNEG + 4 * cb)) for cb in range(2) for r in range(1, 4)]
        return ops
    def exp_ops(blk):
        sq = []
        for half in range(2):
            for cb in range(2):
                v = vals(vX[bufof[blk]], cb)[8 * half: 8 * half + 8]; l = vL + cb
                for j in range(8):
                    r = v[j]
                    if blk < 2: sq.append(Op("v_add_f32 v%d, v%d, v%d" % (r, r, vNEG + 4 * cb)))
                    sq.append(Op("v_exp_f32 v%d, v%d" % (r, r)))
                    if blk == 0 and half == 0 and j == 0: pass
                    elif blk == 0 and half == 0 and j == 1: sq.append(Op("v_add_f32 v%d, v%d, v%d" % (l, v[0], r)))
                    elif opt.get("l2") and blk == 0 and half == 0 and j == 2: pass
                    elif opt.get("l2") and blk == 0 and half == 0 and j == 3: sq.append(Op("v_add_f32 v%d, v%d, v%d" % (l + 2, v[2], r)))
                    elif opt.get("l2"): sq.append(Op("v_add_f32 v%d, v%d, v%d" % (l + 2 * (j & 1), l + 2 * (j & 1), r)))
                    else: sq.append(Op("v_add_f32 v%d, v%d, v%d" % (l, l, r)))
                    if j & 1: sq.append(Op("v_cvt_pk_bf16_f32 v%d, v%d, v%d" % (vP + ((2 * blk + half) * 2 + cb) * 4 + j // 2, v[j - 1], r)))
        return sq
    def fin_ops():
        ops = [Op("v_add_f32 v%d, v%d, v%d" % (vL + cb, vL + cb, vL + 2 + cb)) for cb in range(2)] if opt.get("l2") else []
        ops += zipl(xlane(vL, vT + 2, "v_add_f32"), xlane(vL + 1, vT + 3, "v_add_f32"))
        ops += [Op("v_rcp_f32 v%d, v%d" % (vRL, vL)), Op("v_rcp_f32 v%d, v%d" % (vRL + 1, vL + 1)),
                Op("v_mul_f32 v%d, %s, v%d" % (vRL, f2h(2.0 ** -NSCALE), vRL)), Op("v_mul_f32 v%d, %s, v%d" % (vRL + 1, f2h(2.0 ** -NSCALE), vRL + 1))]
        return ops
    def epi_valu(ob, k):
        half, cb = k >> 1, k & 1
        v = vals(vX[ob & 1], cb)[8 * half: 8 * half + 8]; y = vY + k * 4
        return [Op("v_mul_f32 v%d, v%d, v%d" % (v[j], vRL + cb, v[j])) for j in range(8)] + [Op("v_cvt_pk_bf16_f32 v%d, v%d, v%d" % (y + j, v[2 * j], v[2 * j + 1])) for j in range(4)]
    e0 = 2 * (112 - 4 * LAG)
    S.place_or_grow(max_ops(), e0 + 3, 2 * G - 2, asap=True)
    S.place_or_grow(exp_ops(0), 2 * G - 2, 3 * G - 2)
    S.place_or_grow(exp_ops(1), 3 * G - 2, 4 * G - 2)
    x3 = exp_ops(3); x4 = exp_ops(4)
    k3 = len(x3) // 3; k4 = 2 * len(x4) // 3
    S.place_or_grow(exp_ops(2) + x3[:k3], 4 * G - 2, 5 * G - 2)
    S.place_or_grow(x3[k3:] + x4[:k4], 5 * G - 2, 6 * G - 2)
    S.place_or_grow(x4[k4:] + exp_ops(5), 6 * G - 2, 7 * G - 2)
    S.place_or_grow(exp_ops(6), 7 * G + 3, 8 * G - 2)
    S.place_or_grow(exp_ops(7), p + 3, p + 14 * 8 - 2)
    S.place_or_grow(fin_ops(), p + 14 * 8 - 2, p + 128 + 3, asap=True)
    S.place_or_grow(*fw_valu)
    for ob in range(6):
        e = p + 128 * (ob + 1); g0 = e + 4
        for k in range(4):
            g1 = min(where[("st", ob, k)], e + 126)
            if ob: assert where[("st", ob - 1, k)] + 2 <= g0
            S.place_or_grow(epi_valu(ob, k), g0, g1, look=16); g0 = g1
    tail = [Op("s_nop 7")]
    for k in range(4): tail += epi_valu(6, k) + [ystore(6, k)]
    marks = [0, 55, 111, 223] + [G * b - 1 for b in range(3, 9)] + [p + 128 * b - 1 for b in range(1, 8)]
    for i in range(NM):
        a(mf[i])
        if S.first[i] is not None: emit(S.first[i])
        for o in S.extra[i]: emit(o)
        for o in S.valu[i]: emit(o)
        if i == 895 and opt.get("stamp") and not opt.get("mstamp"):
            c.stamp(); del lg[:]
        if opt.get("mstamp") and i in marks:
            k = marks.index(i); a("s_memtime s[%d:%d]" % (64 + 2 * k, 65 + 2 * k))
    for o in tail: emit(o)
    if opt.get("mstamp"):
        a("s_waitcnt lgkmcnt(0)")
        for k in range(len(marks)):
            a("v_writelane_b32 v%d, s%d, %d" % (vST, 64 + 2 * k, 32 + c.ns)); a("v_writelane_b32 v%d, s8, %d" % (vST, c.ns)); c.ns += 1
        a("s_branch %s" % L("fin"))
    c.stamp()
    c.over = S.over
```

```python
from mega_common import *
from mega_a import vL0, aXC, vC5, vC6
from mega_b import a_w2, lds_w1, aMOD

def phase_cde(c):
    a = c.a; L = c.L; opt = c.opt
    PUB = opt.get("pub", "sc1"); LDF = opt.get("ldf", "sc1")
    W = "s[%d:%d]" % (sW, sW + 3); TG = "s%d" % sTAG
    sR8, sTD, sFT, sT64, sCT, sB, sRG = 40, 41, 42, 43, 44, 45, 46
    sO = 28
    a("s_lshl_b32 s%d, s%d, 5" % (sR8, sX)); a("s_add_u32 s%d, s%d, s%d" % (sR8, sR8, sJ))
    a("s_and_b32 s10, s%d, 1" % sJ); a("s_lshl_b32 s%d, s%d, 1" % (sTD, sX)); a("s_add_u32 s%d, s%d, s10" % (sTD, sTD)); a("s_lshr_b32 s%d, s%d, 1" % (sFT, sJ))
    a("s_and_b32 s10, s%d, 3" % sJ); a("s_lshl_b32 s%d, s%d, 2" % (sT64, sX)); a("s_add_u32 s%d, s%d, s10" % (sT64, sT64)); a("s_lshr_b32 s%d, s%d, 2" % (sCT, sJ))
    srd(a, sO, pOUT, 1835008)
    a("s_lshr_b32 s%d, s%d, 1" % (sB, sR8)); a("s_mul_i32 s%d, s%d, 14336" % (sB, sB)); a("s_and_b32 s9, s%d, 1" % sR8); a("s_lshl_b32 s9, s9, 7"); a("s_add_u32 s%d, s%d, s9" % (sB, sB))
    a("s_lshl_b32 s9, s%d, 1" % sWAVE); a("s_min_u32 s9, s9, 5"); a("s_lshl_b32 s9, s9, 11"); a("s_add_u32 s%d, s%d, s9" % (sB, sB))
    a("s_lshr_b32 s9, s%d, 2" % sR8); flag_addr(a, 11, FL_Y, 9, None, 10)
    a("s_cmp_eq_u32 s%d, 3" % sWAVE); a("s_cselect_b32 s9, 128, 0"); a("s_add_u32 s11, s11, s9")
    a("s_cmp_eq_u32 s%d, 2" % sWAVE); a("s_cselect_b32 s14, 0, 1.0")
    vX, vG, vS, vC = 16, 32, 48, 64
    for k, (dst, src) in enumerate(((vX, aXC), (vG, aMOD), (vS, aMOD + 8), (vC, aMOD + 16))):
        for j in range(8): a("v_accvgpr_read_b32 v%d, a%d" % (80 + j, src + j))
        if k == 0:
            a("s_waitcnt vmcnt(0)")
            a("buffer_store_dword v%d, v%d, %s, s54 offen offset:128 sc1" % (vTAG, vL0, W))
            c.stamp()
            a("s_barrier")
            for o in c.last_dma: a(o.text)
        unpack8(a, dst, 80); unpack8(a, dst + 8, 84)
    for j in range(8): a("v_accvgpr_read_b32 v%d, a%d" % (232 + j, aMOD + 24 + j))
    for j in range(16): a("v_add_f32 v%d, 1.0, v%d" % (vC + j, vC + j))
    NA = opt.get("w2a", 28)
    def w2text(k):
        out = []
        if k % 4 == 0 or k == NA: out.append("s_mov_b32 s57, 0x%x" % ((k & ~3) * 1024))
        out.append("buffer_load_dwordx4 a[%d:%d], v240, %s, s57 offen offset:%d sc1" % (a_w2(k), a_w2(k) + 3, W, (k % 4) * 1024))
        return out
    a("s_cmp_lg_u32 s%d, 3" % sWAVE); a("s_cbranch_scc1 %s" % L("c_now2"))
    for k in range(NA):
        for t in w2text(k): a(t)
    a.label(L("c_now2"))
    c.poll4([(12, 11, 4)])
    c.stamp()
    a("s_add_u32 s9, s%d, %d" % (sB, WS_YP))
    vY = 96
    for h in range(16):
        a("buffer_load_dwordx4 v[%d:%d], v%d, %s, s9 offen sc1" % (vY + 8 * h, vY + 8 * h + 3, vC5, W))
        a("buffer_load_dwordx4 v[%d:%d], v%d, %s, s9 offen offset:2048 sc1" % (vY + 8 * h + 4, vY + 8 * h + 7, vC6, W))
        if h < 15: a("s_add_u32 s9, s9, %d" % (128 * 14336))
    vA = 80
    a("s_mov_b32 s12, 0x00003f80"); a("s_mov_b32 s13, 0x3f800000")
    LS = (1 * 28) * 1024
    a("v_and_b32 v3, 7, v%d" % vLANE); a("v_lshlrev_b32 v12, 5, v3"); a("v_add_u32 v12, %d, v12" % LS)
    a("s_lshl_b32 s9, s%d, 3" % sWAVE); a("v_add_u32 v13, s9, v12")
    for h in range(16):
        a("s_waitcnt vmcnt(%d)" % (2 * (15 - h)))
        for k in range(8):
            r = vY + 8 * h + k
            if h == 0:
                a("v_lshlrev_b32 v%d, 16, v%d" % (vA + 2 * k, r)); a("v_and_b32 v%d, 0xffff0000, v%d" % (vA + 2 * k + 1, r))
            else:
                a("v_dot2c_f32_bf16 v%d, s12, v%d" % (vA + 2 * k, r)); a("v_dot2c_f32_bf16 v%d, s13, v%d" % (vA + 2 * k + 1, r))
    c.stamp()
    a("s_cmp_eq_u32 s%d, 3" % sWAVE); a("s_cbranch_scc1 %s" % L("c_now3"))
    for k in range(NA):
        for t in w2text(k): a(t)
    a.label(L("c_now3"))
    a("s_nop 1")
    for j in range(16): a("v_fma_f32 v%d, v%d, v%d, v%d" % (vA + j, vA + j, vG + j, vX + j))
    a("v_add_f32 v4, v%d, v%d" % (vA, vA + 1)); a("v_add_f32 v6, v%d, v%d" % (vA + 8, vA + 9))
    a("v_mul_f32 v5, v%d, v%d" % (vA, vA)); a("v_mul_f32 v7, v%d, v%d" % (vA + 8, vA + 8))
    for j in range(1, 8):
        if j > 1:
            a("v_add_f32 v4, v4, v%d" % (vA + j)); a("v_add_f32 v6, v6, v%d" % (vA + 8 + j))
        a("v_fmac_f32 v5, v%d, v%d" % (vA + j, vA + j)); a("v_fmac_f32 v7, v%d, v%d" % (vA + 8 + j, vA + 8 + j))
    a("v_fmac_f32 v4, s14, v6"); a("v_fmac_f32 v5, s14, v7")
    dpp_add(a, [4, 5], "row_ror:8"); xrow(a, [4, 5], [6, 7])
    a("ds_write_b64 v13, v[4:5]")
    for j in range(8): a("v_cvt_pk_bf16_f32 v%d, v%d, v%d" % (112 + j, vA + 2 * j, vA + 2 * j + 1))
    a("s_add_u32 s9, s%d, %d" % (sB, WS_X1))
    a("buffer_store_dwordx4 v[112:115], v%d, %s, s9 offen %s" % (vC5, W, PUB)); a("buffer_store_dwordx4 v[116:119], v%d, %s, s9 offen offset:2048 %s" % (vC6, W, PUB))
    a("s_waitcnt lgkmcnt(0)"); a("s_barrier")
    a("ds_read_b128 v[96:99], v12"); a("ds_read_b128 v[100:103], v12 offset:16")
    a("s_add_u32 s9, s%d, %d" % (sB, WS_H2))
    a("s_lshr_b32 s12, s%d, 4" % sR8); a("s_and_b32 s13, s%d, 15" % sR8); flag_addr(a, 10, FL_H2, 12, 13, 11)
    a("s_waitcnt lgkmcnt(0)")
    a("v_add_f32 v96, v96, v98"); a("v_add_f32 v97, v97, v99"); a("v_add_f32 v100, v100, v102"); a("v_add_f32 v101, v101, v103")
    a("v_add_f32 v96, v96, v100"); a("v_add_f32 v97, v97, v101")
    a("v_mul_f32 v96, %s, v96" % f2h(1.0 / 448))
    a("v_mul_f32 v97, %s, v97" % f2h(1.0 / 448))
    a("v_fma_f32 v97, -v96, v96, v97"); a("v_max_f32 v97, 0, v97"); a("v_add_f32 v97, %s, v97" % f2h(1e-5))
    a("v_rsq_f32 v97, v97"); a("s_nop 0")
    a("v_mul_f32 v96, -v96, v97")
    for blk in range(2):
        for j in range(8 * blk, 8 * blk + 8): a("v_fma_f32 v%d, v%d, v97, v96" % (vA + j, vA + j))
        for j in range(8 * blk, 8 * blk + 8): a("v_fma_f32 v%d, v%d, v%d, v%d" % (vA + j, vA + j, vC + j, vS + j))
        for j in range(4 * blk, 4 * blk + 4): a("v_cvt_pk_bf16_f32 v%d, v%d, v%d" % (104 + j, vA + 2 * j, vA + 2 * j + 1))
        a("buffer_store_dwordx4 v[%d:%d], v%d, %s, s9 offen offset:%d %s" % (104 + 4 * blk, 107 + 4 * blk, vC6 if blk else vC5, W, 2048 * blk, PUB))
    a("s_lshl_b32 s%d, s%d, 2" % (sRG, sTD)); a("s_add_u32 s%d, s%d, s%d" % (sRG, sRG, sWAVE))
    flag_addr(a, 11, FL_H2, sTD, None, 12)
    a("s_mul_i32 s13, s%d, 28672" % sRG); a("s_add_u32 s13, s13, %d" % WS_H2)
    a("v_add_u32 v0, s13, v%d" % vL16)
    for j in range(7): a("s_movk_i32 s%d, 0x%x" % (32 + j, j * 4096))
    a("s_waitcnt vmcnt(0)"); a("s_barrier")
    a("buffer_store_dword v%d, v241, %s, s10 offen sc1" % (vTAG, W))
    c.stamp()
    a("s_cmp_ge_u32 s%d, 28" % sJ); a("s_cbranch_scc1 %s" % L("fin"))
    vH, vAb, vD = 112, 80, 16
    frs = [(ks, t8) for ks in range(14) for t8 in range(8)]
    def rd(n):
        ks, t8 = frs[n]; off = lds_w1((t8 >> 2) * 56 + ks * 4 + (t8 & 3)); b = vAb + 4 * (n % 8)
        a("ds_read_b128 v[%d:%d], v%d offset:%d" % (b, b + 3, [vL16, 225, 226][off >> 16], off & 0xffff))
    DD = 6
    a("s_waitcnt vmcnt(0)")
    for n in range(DD): rd(n)
    c.poll4([(12, 11, 4)], one_wave=True)
    c.stamp()
    q = []
    for ks in range(14):
        for cb in range(2):
            off = (cb * 14 + ks) * 1024; r = vH + (ks * 2 + cb) * 4
            q.append((["buffer_load_dwordx4 v[%d:%d], v0, %s, s%d offen offset:%d %s" % (r, r + 3, W, 32 + (off >> 12), off & 4095, LDF)], ks))
    for k in range(NA, 56): q.append((w2text(k), 99))
    vm = []
    def issue():
        t, tag = q.pop(0)
        for x in t: a(x)
        vm.append(tag)
    def need(tag):
        last = max(i for i, t in enumerate(vm) if t == tag)
        a("s_waitcnt vmcnt(%d)" % (len(vm) - 1 - last)); del vm[:last + 1]
    for _ in range(opt.get("dpre", 14)): issue()
    DR = opt.get("drate", 2)
    for n, (ks, t8) in enumerate(frs):
        if t8 == 0: need(ks)
        if n % 2 == 0: a("s_waitcnt lgkmcnt(%d)" % max(min(n + DD, len(frs)) - n - 2, 0))
        b = vAb + 4 * (n % 8)
        for u in range(2):
            cb = u ^ (t8 & 1); acc = vD + (t8 * 2 + cb) * 4; r = vH + (ks * 2 + cb) * 4
            a("v_mfma_f32_16x16x32_bf16 v[%d:%d], v[%d:%d], v[%d:%d], %s" % (acc, acc + 3, b, b + 3, r, r + 3, "0" if ks == 0 else "v[%d:%d]" % (acc, acc + 3)))
            if u == 0 and n + DD < len(frs): rd(n + DD)
            if u == 1 and n % DR == 0 and q: issue()
    assert not q
    a("s_mul_i32 s9, s%d, %d" % (sRG, 2 * 56 * 1024)); a("s_lshl_b32 s10, s%d, 12" % sFT); a("s_add_u32 s9, s9, s10"); a("s_add_u32 s9, s9, %d" % WS_HH)
    a("s_add_u32 s10, s9, %d" % (56 * 1024))
    for pr in range(4):
        for cb in range(2):
            src = [vD + ((2 * pr) * 2 + cb) * 4 + r for r in range(4)] + [vD + ((2 * pr + 1) * 2 + cb) * 4 + r for r in range(4)]
            o = vAb + (pr * 2 + cb) * 4
            for j in range(4): a("v_cvt_pk_bf16_f32 v%d, v%d, v%d" % (o + j, src[2 * j], src[2 * j + 1]))
            for j in range(4): a("v_pk_max_i16 v%d, v%d, 0" % (o + j, o + j))
            a("buffer_store_dwordx4 v[%d:%d], v%d, %s, s%d offen offset:%d %s" % (o, o + 3, vL16, W, 9 + cb, pr * 1024, PUB))
    c.stamp()
    a("s_lshr_b32 s12, s%d, 1" % sRG); a("s_and_b32 s13, s%d, 1" % sRG); a("s_mul_i32 s13, s13, 14"); a("s_add_u32 s13, s13, s%d" % sFT); flag_addr(a, 9, FL_HH, 12, 13, 11)
    flag_addr(a, 11, FL_HH, sT64, None, 10)
    a("s_mul_i32 s13, s%d, %d" % (sT64, 4 * 56 * 1024)); a("s_mul_i32 s10, s%d, %d" % (sWAVE, 14 * 1024)); a("s_add_u32 s13, s13, s10"); a("s_add_u32 s13, s13, %d" % WS_HH)
    for j in range(4):
        a("s_xor_b32 s10, s%d, %d" % (sWAVE, j)); a("s_mul_i32 s12, s10, %d" % (56 * 1024)); a("s_add_u32 s12, s12, s13"); a("v_add_u32 v%d, s12, v%d" % (4 + j, vL16))
        if j:
            a("s_mul_i32 s12, s10, 12288"); a("s_add_u32 s12, s12, %d" % ((j - 1) * 4096)); a("v_add_u32 v%d, s12, v%d" % (8 + j, vL16))
    a("s_lshl_b32 s59, s%d, 2" % sT64); a("s_add_u32 s59, s59, s%d" % sWAVE)
    a("s_mul_i32 s14, s59, 14336"); a("s_lshl_b32 s10, s%d, 11" % sCT); a("s_add_u32 s14, s14, s10"); a("s_add_u32 s14, s14, %d" % WS_X1)
    a("v_lshrrev_b32 v8, 4, v%d" % vLANE)
    a("v_and_b32 v2, 15, v%d" % vLANE); a("v_mul_u32_u24 v2, 896, v2"); a("v_lshl_add_u32 v2, v8, 4, v2")
    a("s_mul_i32 s15, s59, %d" % (16 * 896)); a("s_lshl_b32 s10, s%d, 7" % sCT); a("s_add_u32 s15, s15, s10")
    a("s_mul_i32 s10, s%d, 12288" % sWAVE); a("v_add_u32 v1, s10, v%d" % vL16)
    a("s_waitcnt vmcnt(0)")
    a("buffer_store_dword v%d, v%d, %s, s9 offen sc1" % (vTAG, vL0, W))
    c.stamp()
    a("s_waitcnt vmcnt(0)")
    c.poll4([(12, 11, 7)], one_wave=True)
    c.stamp()
    NBUF = 9; vB = 80
    vm = []; q = []
    for ks in range(14):
        for cb in range(4):
            r = vB + (ks % NBUF) * 16 + 4 * cb
            q.append((["buffer_load_dwordx4 v[%d:%d], v%d, %s, s%d offen offset:%d %s" % (r, r + 3, 4 + cb, W, 32 + (ks >> 2), (ks & 3) * 1024, LDF)], ks))
    q.append((["buffer_load_dwordx4 v[224:227], v%d, %s, s14 offen %s" % (vL16, W, LDF)], 99))
    q.append((["buffer_load_dwordx4 v[228:231], v%d, %s, s14 offen offset:1024 %s" % (vL16, W, LDF)], 99))
    for _ in range(opt.get("epre", 16)): issue()
    ER = opt.get("erate", 3)
    m = 0
    for ks in range(14):
        while ks not in vm or (q and q[0][1] == ks): issue()
        need(ks)
        for t in range(4):
            for u in range(4):
                cb = u if t % 2 == 0 else 3 - u
                acc = vD + (t * 4 + cb) * 4; A = a_w2(ks * 4 + t); B = vB + (ks % NBUF) * 16 + 4 * cb
                a("v_mfma_f32_16x16x32_bf16 v[%d:%d], a[%d:%d], v[%d:%d], %s" % (acc, acc + 3, A, A + 3, B, B + 3, "0" if ks == 0 else "v[%d:%d]" % (acc, acc + 3)))
                m += 1
                if m % ER == 0 and q and (q[0][1] == 99 or q[0][1] < ks + NBUF): issue()
    while q: issue()
    unpack8(a, 96, 232); unpack8(a, 104, 236)
    for j in range(3, 0, -1):
        for t in range(4):
            acc = vD + (t * 4 + j) * 4
            a("ds_write_b128 v%d, v[%d:%d] offset:%d" % (8 + j, acc, acc + 3, t * 1024))
    a("s_waitcnt vmcnt(0)")
    unpack8(a, 80, 224); unpack8(a, 88, 228)
    a("s_waitcnt lgkmcnt(0)"); a("s_barrier")
    for j in range(3):
        for t in range(4):
            r = 112 + (j * 4 + t) * 4
            a("ds_read_b128 v[%d:%d], v1 offset:%d" % (r, r + 3, j * 4096 + t * 1024))
    own = [vD + (t * 4) * 4 + r for t in range(4) for r in range(4)]
    for j in range(3):
        a("s_waitcnt lgkmcnt(%d)" % (8 - 4 * j))
        for k in range(16): a("v_add_f32 v%d, v%d, v%d" % (own[k], own[k], 112 + 16 * j + k))
    for pr in range(2):
        for k in range(8 * pr, 8 * pr + 8): a("v_fma_f32 v%d, v%d, v%d, v%d" % (80 + k, own[k], 96 + k, 80 + k))
        for j in range(4): a("v_cvt_pk_bf16_f32 v%d, v%d, v%d" % (160 + 4 * pr + j, 80 + 8 * pr + 2 * j, 81 + 8 * pr + 2 * j))
        a("buffer_store_dwordx4 v[%d:%d], v2, s[%d:%d], s15 offen offset:%d %s" % (160 + 4 * pr, 163 + 4 * pr, sO, sO + 3, pr * 64, opt.get("of", "")))
    c.stamp()
    a.label(L("fin"))
```

```python
from common import *
import math, struct
def f2h(x): return "0x%08x" % struct.unpack("<I", struct.pack("<f", x))[0]
WS_FL = 0x4400000
FL_A, FL_B, FL_N, FL_W, FL_Y, FL_H2, FL_HH, FL_A2 = [WS_FL + 0x50000 * i for i in range(8)]
WS_MOD2 = WS_MOD + 0x4000
FS = 4352
OOR = 0x7ffffff0 & ~0xf
sWAVE, sX, sJ, sHEAD, sT, sTAG = 3, 4, 5, 6, 7, 8
sW, sD = 16, 20
pX, pK, pV, pWQ, pWO, pBX, pW1, pW2, pC, pWM, pOUT, pDBG, pWS = [64 + 2 * i for i in range(13)]
vLANE, vL16, vTAG, vST = 252, 253, 254, 255
SPIN = 0x8000

class Ctx:
    def __init__(self, name, opt):
        self.a = Asm(); self.name = name; self.opt = opt; self.ns = 0; self.nl = 0
    def L(self, s): return "%s_%s" % (self.name, s)
    def stamp(self):
        if "amp" in self.opt:
            self.na = getattr(self, "na", 0) + 1
            if self.na == self.opt["amp"]: self.a("s_memrealtime s[100:101]")
            return
        if not self.opt.get("stamp"): return
        a = self.a
        a("s_memrealtime s[90:91]"); a("s_memtime s[100:101]"); a("s_waitcnt lgkmcnt(0)"); a("v_writelane_b32 v%d, s90, %d" % (vST, self.ns))
        a("v_writelane_b32 v%d, s100, %d" % (vST, 32 + self.ns)); self.ns += 1
    def stamp_flush(self):
        if "amp" in self.opt:
            a = self.a
            if self.opt["amp"] == 99:
                a("s_getreg_b32 s100, hwreg(HW_REG_XCC_ID)"); a("s_sub_u32 s100, s100, s2"); a("s_and_b32 s100, s100, 7"); a("s_mul_i32 s100, s100, 200"); a("s_add_u32 s100, s100, s90")
            if self.opt["amp"] == 98:
                a("s_waitcnt vmcnt(0)"); a("s_memrealtime s[100:101]")
            a("s_memrealtime s[92:93]"); a("s_waitcnt lgkmcnt(0)")
            a("s_sub_u32 s94, s100, s90"); a("s_min_u32 s94, s94, 20000"); a("s_mul_i32 s94, s94, 10")
            a.label(self.L("amp_l"))
            a("s_memrealtime s[96:97]"); a("s_waitcnt lgkmcnt(0)"); a("s_sub_u32 s95, s96, s92"); a("s_cmp_lt_u32 s95, s94"); a("s_cbranch_scc1 %s" % self.L("amp_l"))
            return
        if not self.opt.get("stamp"): return
        a = self.a
        a("s_waitcnt vmcnt(0)")
        a("s_memrealtime s[90:91]"); a("s_waitcnt lgkmcnt(0)"); a("v_writelane_b32 v%d, s90, 31" % vST)
        a("s_lshl_b32 s92, s2, 2"); a("s_add_u32 s92, s92, s%d" % sWAVE); a("s_lshl_b32 s92, s92, 8"); a("s_add_u32 s92, s92, %d" % WS_TS)
        a("s_mov_b64 exec, -1")
        a("v_lshlrev_b32 v0, 2, v%d" % vLANE)
        a("buffer_store_dword v%d, v0, s[%d:%d], s92 offen" % (vST, sW, sW + 3))
    def poll(self, loads, regs_tags, sctr=63, first_issued=None):
        a = self.a; self.nl += 1; n = self.nl
        a("s_mov_b32 s%d, %d" % (sctr, SPIN))
        if first_issued is not None:
            a(first_issued); a("s_branch %s" % self.L("pc%d" % n))
        a.label(self.L("pl%d" % n))
        for t in loads: a(t)
        a("s_waitcnt vmcnt(0)")
        a.label(self.L("pc%d" % n))
        for k, (r, tg) in enumerate(regs_tags):
            if k == 0: a("v_cmp_ne_u32 vcc, %s, v%d" % (tg, r))
            else:
                a("v_cmp_ne_u32 s[60:61], %s, v%d" % (tg, r)); a("s_or_b64 vcc, vcc, s[60:61]")
        a("s_nop 0")
        a("s_cbranch_vccz %s" % self.L("pd%d" % n))
        if self.opt.get("sleep", 2): a("s_sleep %d" % self.opt.get("sleep", 2))
        a("s_sub_u32 s%d, s%d, 1" % (sctr, sctr)); a("s_cmp_lg_u32 s%d, 0" % sctr)
        a("s_cbranch_scc1 %s" % self.L("pl%d" % n))
        a.label(self.L("pd%d" % n))

    def poll4(self, groups, one_wave=False, sctr=63):
        a = self.a; self.nl += 1; n = self.nl
        nl = max(g[2] for g in groups)
        if one_wave:
            a("s_cmp_lg_u32 s%d, 0" % sWAVE); a("s_cbranch_scc1 %s" % self.L("pe%d" % n))
        a("s_mov_b32 s%d, %d" % (sctr, SPIN))
        a.label(self.L("pl%d" % n))
        a("s_mov_b64 vcc, 0")
        for r, so, k in groups:
            a("s_mov_b64 exec, 0x%x" % ((1 << k) - 1))
            a("buffer_load_dwordx4 v[%d:%d], v%d, s[%d:%d], s%d offen sc1" % (r, r + 3, vL16, sW, sW + 3, so))
        a("s_waitcnt vmcnt(0)")
        for r, so, k in groups:
            if len(groups) > 1: a("s_mov_b64 exec, 0x%x" % ((1 << k) - 1))
            for j in range(4):
                a("v_cmp_ne_u32 s[60:61], s%d, v%d" % (sTAG, r + j)); a("s_or_b64 vcc, vcc, s[60:61]")
        a("s_cbranch_vccz %s" % self.L("pd%d" % n))
        if self.opt.get("sleep", 2): a("s_sleep %d" % self.opt.get("sleep", 2))
        a("s_sub_u32 s%d, s%d, 1" % (sctr, sctr)); a("s_cmp_lg_u32 s%d, 0" % sctr)
        a("s_cbranch_scc1 %s" % self.L("pl%d" % n))
        a.label(self.L("pd%d" % n))
        a("s_mov_b64 exec, -1")
        if one_wave:
            a.label(self.L("pe%d" % n))
            a("s_barrier")

def xrow(a, rs, ts, op="v_add_f32"):
    for sw in ("v_permlane16_swap_b32", "v_permlane32_swap_b32"):
        for r, t in zip(rs, ts): a("v_mov_b32 v%d, v%d" % (t, r))
        a("s_nop 1")
        for r, t in zip(rs, ts): a("%s v%d, v%d" % (sw, r, t))
        a("s_nop 1")
        for r, t in zip(rs, ts): a("%s v%d, v%d, v%d" % (op, r, r, t))
def dpp_add(a, rs, ctl):
    a("s_nop 1")
    for r in rs: a("v_add_f32_dpp v%d, v%d, v%d %s row_mask:0xf bank_mask:0xf" % (r, r, r, ctl))
def wave_sum(a, rs, ts):
    for ctl in ("quad_perm:[1,0,3,2]", "quad_perm:[2,3,0,1]", "row_ror:4", "row_ror:8"): dpp_add(a, rs, ctl)
    xrow(a, rs, ts)
def unpack8(a, dst, src, stride=1):
    for j in range(4):
        a("v_lshlrev_b32 v%d, 16, v%d" % (dst + 2 * j, src + j * stride))
        a("v_and_b32 v%d, 0xffff0000, v%d" % (dst + 2 * j + 1, src + j * stride))

def flag_addr(a, dst, base, sgrp, sidx, tmp):
    a("s_mul_i32 s%d, s%d, %d" % (dst, sgrp, FS))
    if sidx is not None:
        a("s_lshl_b32 s%d, s%d, 2" % (tmp, sidx)); a("s_add_u32 s%d, s%d, s%d" % (dst, dst, tmp))
    a("s_add_u32 s%d, s%d, %d" % (dst, dst, base))
```

```python
import sys, json
from mega_common import *
import mega_a, mega_b, mega_c
def build(opt=None):
    opt = opt or {}
    name = PFX + "_kernel"
    c = Ctx("mk", opt); a = c.a
    kernel_head(a, name)
    mega_a.phase_a(c, "(mk_end - %s - 16)" % name)
    mega_b.phase_b(c)
    st = opt.get("stamp")
    if opt.get("mstamp"): opt["stamp"] = False
    mega_c.phase_cde(c)
    opt["stamp"] = st
    c.stamp_flush()
    a.label("mk_end"); a("s_endpgm")
    c.slow_path()
    s = "; @launch grid=(256,1,1) block=(256,1,1) lds=163840\n"
    s += '.amdgcn_target "amdgcn-amd-amdhsa--gfx950"\n.text\n' + a.text() + '.section .rodata,"a"\n' + kernel_desc(name, 256, 256, 102)
    return s, c
if __name__ == "__main__":
    opt = json.loads(sys.argv[2]) if len(sys.argv) > 2 else {}
    s, c = build(opt)
    open(sys.argv[1], "w").write(s)
    print("over", c.over, "stamps", c.ns)
```

```python
from common import *
import math, struct
def f2h(x): return "0x%08x" % struct.unpack("<I", struct.pack("<f", x))[0]
WS_FL = 0x4400000
FL_A, FL_B, FL_N, FL_W, FL_Y, FL_H2, FL_HH, FL_A2 = [WS_FL + 0x50000 * i for i in range(8)]
WS_MOD2 = WS_MOD + 0x4000
FS = 4352
OOR = 0x7ffffff0 & ~0xf
sWAVE, sX, sJ, sHEAD, sT, sTAG = 3, 4, 5, 6, 7, 8
sW, sD = 16, 20
pX, pK, pV, pWQ, pWO, pBX, pW1, pW2, pC, pWM, pOUT, pDBG, pWS = [64 + 2 * i for i in range(13)]
vLANE, vL16, vTAG, vST = 252, 253, 254, 255
SPIN = 0x8000

class Ctx:
    def __init__(self, name, opt):
        self.a = Asm(); self.name = name; self.opt = opt; self.ns = 0; self.nl = 0
    def L(self, s): return "%s_%s" % (self.name, s)
    def stamp(self):
        if not self.opt.get("stamp"): return
        a = self.a
        a("s_memrealtime s[90:91]"); a("s_memtime s[100:101]"); a("s_waitcnt lgkmcnt(0)"); a("v_writelane_b32 v%d, s90, %d" % (vST, self.ns))
        a("v_writelane_b32 v%d, s100, %d" % (vST, 32 + self.ns)); self.ns += 1
    def stamp_flush(self):
        if not self.opt.get("stamp"): return
        a = self.a
        a("s_waitcnt vmcnt(0)")
        a("s_memrealtime s[90:91]"); a("s_waitcnt lgkmcnt(0)"); a("v_writelane_b32 v%d, s90, 31" % vST)
        a("s_lshl_b32 s92, s2, 2"); a("s_add_u32 s92, s92, s%d" % sWAVE); a("s_lshl_b32 s92, s92, 8"); a("s_add_u32 s92, s92, %d" % WS_TS)
        a("s_mov_b64 exec, -1")
        a("v_lshlrev_b32 v0, 2, v%d" % vLANE)
        a("buffer_store_dword v%d, v0, s[%d:%d], s92 offen" % (vST, sW, sW + 3))
    def poll(self, loads, regs_tags, sctr=63, first_issued=None):
        a = self.a; self.nl += 1; n = self.nl
        a("s_mov_b32 s%d, %d" % (sctr, SPIN))
        if first_issued is not None:
            a(first_issued); a("s_branch %s" % self.L("pc%d" % n))
        a.label(self.L("pl%d" % n))
        for t in loads: a(t)
        a("s_waitcnt vmcnt(0)")
        a.label(self.L("pc%d" % n))
        for k, (r, tg) in enumerate(regs_tags):
            if k == 0: a("v_cmp_ne_u32 vcc, %s, v%d" % (tg, r))
            else:
                a("v_cmp_ne_u32 s[60:61], %s, v%d" % (tg, r)); a("s_or_b64 vcc, vcc, s[60:61]")
        a("s_nop 0")
        a("s_cbranch_vccz %s" % self.L("pd%d" % n))
        if self.opt.get("sleep", 2): a("s_sleep %d" % self.opt.get("sleep", 2))
        a("s_sub_u32 s%d, s%d, 1" % (sctr, sctr)); a("s_cmp_lg_u32 s%d, 0" % sctr)
        a("s_cbranch_scc1 %s" % self.L("pl%d" % n))
        a.label(self.L("pd%d" % n))

    def poll4(self, groups, one_wave=False, sctr=63):
        a = self.a; self.nl += 1; n = self.nl
        nl = max(g[2] for g in groups)
        if one_wave:
            a("s_cmp_lg_u32 s%d, 0" % sWAVE); a("s_cbranch_scc1 %s" % self.L("pe%d" % n))
        a("s_mov_b32 s%d, %d" % (sctr, SPIN))
        a.label(self.L("pl%d" % n))
        a("s_mov_b64 vcc, 0")
        for r, so, k in groups:
            a("s_mov_b64 exec, 0x%x" % ((1 << k) - 1))
            a("buffer_load_dwordx4 v[%d:%d], v%d, s[%d:%d], s%d offen sc1" % (r, r + 3, vL16, sW, sW + 3, so))
        a("s_waitcnt vmcnt(0)")
        for r, so, k in groups:
            if len(groups) > 1: a("s_mov_b64 exec, 0x%x" % ((1 << k) - 1))
            for j in range(4):
                a("v_cmp_ne_u32 s[60:61], s%d, v%d" % (sTAG, r + j)); a("s_or_b64 vcc, vcc, s[60:61]")
        a("s_cbranch_vccz %s" % self.L("pd%d" % n))
        if self.opt.get("sleep", 2): a("s_sleep %d" % self.opt.get("sleep", 2))
        a("s_sub_u32 s%d, s%d, 1" % (sctr, sctr)); a("s_cmp_lg_u32 s%d, 0" % sctr)
        a("s_cbranch_scc1 %s" % self.L("pl%d" % n))
        a.label(self.L("pd%d" % n))
        a("s_mov_b64 exec, -1")
        if one_wave:
            a.label(self.L("pe%d" % n))
            a("s_barrier")

def xrow(a, rs, ts, op="v_add_f32"):
    for sw in ("v_permlane16_swap_b32", "v_permlane32_swap_b32"):
        for r, t in zip(rs, ts): a("v_mov_b32 v%d, v%d" % (t, r))
        a("s_nop 1")
        for r, t in zip(rs, ts): a("%s v%d, v%d" % (sw, r, t))
        a("s_nop 1")
        for r, t in zip(rs, ts): a("%s v%d, v%d, v%d" % (op, r, r, t))
def dpp_add(a, rs, ctl):
    a("s_nop 1")
    for r in rs: a("v_add_f32_dpp v%d, v%d, v%d %s row_mask:0xf bank_mask:0xf" % (r, r, r, ctl))
def wave_sum(a, rs, ts):
    for ctl in ("quad_perm:[1,0,3,2]", "quad_perm:[2,3,0,1]", "row_ror:4", "row_ror:8"): dpp_add(a, rs, ctl)
    xrow(a, rs, ts)
def unpack8(a, dst, src, stride=1):
    for j in range(4):
        a("v_lshlrev_b32 v%d, 16, v%d" % (dst + 2 * j, src + j * stride))
        a("v_and_b32 v%d, 0xffff0000, v%d" % (dst + 2 * j + 1, src + j * stride))

def flag_addr(a, dst, base, sgrp, sidx, tmp):
    a("s_mul_i32 s%d, s%d, %d" % (dst, sgrp, FS))
    if sidx is not None:
        a("s_lshl_b32 s%d, s%d, 2" % (tmp, sidx)); a("s_add_u32 s%d, s%d, s%d" % (dst, dst, tmp))
    a("s_add_u32 s%d, s%d, %d" % (dst, dst, base))
```
